```python
import torch

def _softmax(x, axis=-1):
    return torch.softmax(x, dim=axis)
def _gelu(x):
    return torch.nn.functional.gelu(x, approximate="tanh")
def _silu(x):
    return torch.nn.functional.silu(x)
def _sigmoid(x):
    return torch.sigmoid(x)
def _layernorm(x, axis=-1, eps=1e-5):
    m = x.mean(dim=axis, keepdim=True)
    v = x.var(dim=axis, keepdim=True, unbiased=False)
    return (x - m) / torch.sqrt(v + eps)
def _scatter_add(tgt, idx, src, axis=0):
    return tgt.clone().index_add_(axis, idx, src)
def _segment_sum(src, seg, n):
    out = torch.zeros((n,) + src.shape[1:], dtype=src.dtype)
    return out.index_add_(0, seg, src)
def _pad(x, pw):
    flat = tuple(v for pair in reversed(pw) for v in pair)
    return torch.nn.functional.pad(x, flat)

kernel_name = 'recurrent_scan__linear_kernel_hedgehog__dense_activation_squared_relu__prompt'

def setup_inputs():

    _w = (lambda a: (lambda t: t.to(torch.bfloat16) if t.is_floating_point() else t)(torch.as_tensor(a)))
    def _A_setup():
        B, S, D, H = 1, 2048, 512, 32
        Dh = D // H
        return {
            "x": _w((lambda *s: torch.randn(*s, dtype=torch.bfloat16) * 0.05)(B, S, D)),
            "wqkv": _w((lambda *s: torch.randn(*s, dtype=torch.bfloat16) * 0.2)(D, 3 * D)),
            "w_phi": _w((lambda *s: torch.randn(*s, dtype=torch.bfloat16) * 0.2)(H, Dh, Dh) * (Dh ** -0.5)),
            "wo": _w((lambda *s: torch.randn(*s, dtype=torch.bfloat16) * 0.05)(D, D)),
        }
    _A_in = _A_setup()

    def _B_setup():
        B, S, D, F = 1, 2048, 512, 1792
        return {
            "x": _w((lambda *s: torch.randn(*s, dtype=torch.bfloat16) * 0.05)(B, S, D)),
            "w1": _w((lambda *s: torch.randn(*s, dtype=torch.bfloat16) * 0.05)(D, F)),
            "b1": _w((lambda *s: torch.randn(*s, dtype=torch.bfloat16) * 0.2)(F)),
            "w2": _w((lambda *s: torch.randn(*s, dtype=torch.bfloat16) * 0.05)(F, D)),
            "b2": _w((lambda *s: torch.randn(*s, dtype=torch.bfloat16) * 0.8)(D)),
        }
    _B_in = _B_setup()

    return {
        "A_x": _A_in["x"],
        "A_wqkv": _A_in["wqkv"],
        "A_w_phi": _A_in["w_phi"],
        "A_wo": _A_in["wo"],
        "B_x": _B_in["x"],
        "B_w1": _B_in["w1"],
        "B_b1": _B_in["b1"],
        "B_w2": _B_in["w2"],
        "B_b2": _B_in["b2"],
    }

def reference(A_x, A_wqkv, A_w_phi, A_wo, B_x, B_w1, B_b1, B_w2, B_b2):
    def _A_ref(x, wqkv, w_phi, wo):
        B, S, D = x.shape
        H = 32; Dh = D // H
        qkv = (lambda x, *d: x.permute(*d))((x @ wqkv).reshape(B, S, 3, H, Dh), 2, 0, 3, 1, 4)
        q, k, v = qkv[0], qkv[1], qkv[2]
        pq = torch.einsum("bhsd,hdf->bhsf", q, w_phi)
        pk = torch.einsum("bhsd,hdf->bhsf", k, w_phi)
        phi_q = torch.concatenate([_softmax(pq, axis=-1), _softmax(-pq, axis=-1)], axis=-1)
        phi_k = torch.concatenate([_softmax(pk, axis=-1), _softmax(-pk, axis=-1)], axis=-1)
        kv = torch.einsum("bhsf,bhsd->bhfd", phi_k, v)
        z  = torch.einsum("bhsf->bhf", phi_k)
        num = torch.einsum("bhqf,bhfd->bhqd", phi_q, kv)
        den = torch.einsum("bhqf,bhf->bhq", phi_q, z)[..., None] + 1e-6
        o = num / den
        return (lambda x, *d: x.permute(*d))(o, 0, 2, 1, 3).reshape(B, S, D) @ wo

    def _B_ref(x, w1, b1, w2, b2):
        h = torch.einsum("bsd,df->bsf", x, w1) + b1
        zero = torch.zeros_like(h)
        r = torch.where(h > zero, h, zero)
        h = r * r
        out = torch.einsum("bsf,fd->bsd", h, w2) + b2
        return out

    x = A_x
    xn = _layernorm(x, axis=-1)
    s = _A_ref(xn, A_wqkv, A_w_phi, A_wo)
    g = _silu(_B_ref(xn, B_w1, B_b1, B_w2, B_b2))
    return x + s * g
```

```python
import re

_REG = re.compile(r'\b([vas])(\d+)\b|\b([vas])\[(\d+):(\d+)\]')

def regs_of(tok):
    out = []
    for m in _REG.finditer(tok):
        if m.group(1):
            out.append((m.group(1), int(m.group(2))))
        else:
            for i in range(int(m.group(4)), int(m.group(5)) + 1):
                out.append((m.group(3), i))
    if re.search(r'\bvcc\b', tok): out.append(('s', 'vcc'))
    if re.search(r'\bm0\b', tok): out.append(('s', 'm0'))
    if re.search(r'\bexec\b', tok): out.append(('s', 'exec'))
    return out

def split_ops(s):
    ops, depth, cur = [], 0, ''
    for ch in s:
        if ch in '[(': depth += 1
        if ch in '])': depth -= 1
        if ch == ',' and depth == 0:
            ops.append(cur.strip()); cur = ''
        else:
            cur += ch
    if cur.strip(): ops.append(cur.strip())
    return ops

TRANS = ('v_exp_f32', 'v_log_f32', 'v_rcp_f32', 'v_rsq_f32', 'v_sqrt_f32', 'v_sin_f32', 'v_cos_f32')

class Ins:
    __slots__ = ('text', 'mn', 'kind', 'w', 'r', 'srcc', 'passes', 'wide', 'lds_dma')

def parse(text):
    t = text.strip()
    ins = Ins(); ins.text = t
    parts = t.split(None, 1)
    mn = parts[0]; ins.mn = mn
    rest = parts[1] if len(parts) > 1 else ''
    ops = split_ops(rest)
    ins.w, ins.r, ins.srcc, ins.passes, ins.wide, ins.lds_dma = [], [], [], 0, False, False
    allr = lambda lst: [x for o in lst for x in regs_of(o)]
    if mn.startswith('v_mfma'):
        ins.kind = 'mfma'
        ins.w = regs_of(ops[0]); ins.r = allr(ops[1:3]); ins.srcc = regs_of(ops[3])
        ins.passes = 8 if '32x32' in mn else 4
    elif mn.startswith('v_cmp'):
        ins.kind = 'valu'; ins.w = regs_of(ops[0]); ins.r = allr(ops[1:])
    elif mn.startswith('v_permlane') and 'swap' in mn:
        ins.kind = 'valu'; ins.w = allr(ops); ins.r = allr(ops)
    elif mn.startswith('v_'):
        ins.kind = 'trans' if mn.replace('_e32', '').replace('_e64', '') in TRANS else 'valu'
        ins.w = regs_of(ops[0]); ins.r = allr(ops[1:])
        if mn.startswith(('v_fmac', 'v_dot2c', 'v_pk_fmac')): ins.r += ins.w
        if mn.startswith(('v_add_co', 'v_sub_co', 'v_addc_co', 'v_subb_co')):
            ins.w += regs_of(ops[1])
        if mn.startswith('v_cndmask') and len(ops) == 3: ins.r.append(('s', 'vcc'))
        if mn.startswith('v_writelane'): ins.r += ins.w
    elif mn.startswith(('buffer_', 'global_')):
        ins.kind = 'vmem'
        if re.search(r'\blds\b', rest) or 'load_lds' in mn:
            ins.r = allr(ops) + [('s', 'm0')]; ins.lds_dma = True
        elif 'store' in mn:
            ins.r = allr(ops); ins.wide = ('x4' in mn or 'x3' in mn)
        elif 'atomic' in mn:
            ins.r = allr(ops)
            if re.search(r'\bsc0\b', rest): ins.w = regs_of(ops[0])
        else:
            ins.w = regs_of(ops[0]); ins.r = allr(ops[1:])
            if 'd16' in mn: ins.r += ins.w
    elif mn.startswith('ds_'):
        ins.kind = 'lds'
        if mn.startswith(('ds_write', 'ds_add_f32', 'ds_add_u32', 'ds_max', 'ds_min', 'ds_or')) and 'rtn' not in mn:
            ins.r = allr(ops)
        else:
            ins.w = regs_of(ops[0]); ins.r = allr(ops[1:])
    elif mn.startswith('s_'):
        ins.kind = 'salu'
        if mn in ('s_waitcnt', 's_nop', 's_barrier', 's_endpgm', 's_sleep', 's_setprio') or mn.startswith(('s_branch', 's_cbranch')):
            ins.kind = 'ctl'
        elif mn.startswith('s_cmp') or mn.startswith('s_bitcmp'):
            ins.r = allr(ops)
        elif mn.startswith(('s_load', 's_memtime', 's_memrealtime')):
            ins.kind = 'smem'; ins.w = regs_of(ops[0]); ins.r = allr(ops[1:])
        else:
            ins.w = regs_of(ops[0]); ins.r = allr(ops[1:])
            if 'saveexec' in mn: ins.w.append(('s', 'exec'))
    else:
        raise ValueError('unknown instr ' + t)
    return ins


class Gen:
    def __init__(self):
        self.out = []
        self.reset_state()

    def reset_state(self):
        self.pos = 0
        self.vq = []
        self.lq = []
        self.lastw = {}
        self.srcc_rd = {}
        self.wide_rd = {}
        self.mfma_d = {}

    def raw(self, text):
        self.out.append(text)

    def comment(self, text):
        self.out.append('    ; ' + text)

    def label(self, name, nop=True):
        self.out.append(name + ':')
        if nop:
            self.out.append('    s_nop 15'); self.pos += 16
            self.out.append('    s_nop 3'); self.pos += 4

    def forget_pending(self):
        self.vq = []; self.lq = []

    def _emit(self, text, states=1):
        self.out.append('    ' + text)
        self.pos += states

    def _wait(self, q, regs, maxn, name):
        idx = -1
        for i, d in enumerate(q):
            if d and any(r in d for r in regs): idx = i
        if idx >= 0:
            n = len(q) - 1 - idx
            n = min(n, maxn)
            self._emit(f's_waitcnt {name}({n})')
            del q[:len(q) - n]

    def I(self, text):
        for line in text.strip().split('\n'):
            line = line.split(';')[0].strip()
            if line: self._I(line)

    def _I(self, text):
        ins = parse(text)
        mn = ins.mn
        if mn == 's_waitcnt':
            m = re.search(r'vmcnt\((\d+)\)', text)
            if m:
                n = int(m.group(1))
                if len(self.vq) > n: del self.vq[:len(self.vq) - n]
            m = re.search(r'lgkmcnt\((\d+)\)', text)
            if m:
                n = int(m.group(1))
                if len(self.lq) > n: del self.lq[:len(self.lq) - n]
            self._emit(text); return
        if mn == 's_nop':
            n = int(text.split()[1]); self._emit(text, n + 1); return
        touched = list(ins.r) + list(ins.w) + list(ins.srcc)
        self._wait(self.vq, touched, 63, 'vmcnt')
        self._wait(self.lq, touched, 15, 'lgkmcnt')
        need = 0
        def req(ppos, ws):
            nonlocal need
            gap = self.pos - ppos - 1
            if gap < ws: need = max(need, ws - gap)
        isv = ins.kind in ('valu', 'trans')
        for r in ins.r + ins.srcc:
            lw = self.lastw.get(r)
            if not lw: continue
            p, k, ps = lw
            if k == 'dot':
                if not mn.startswith('v_dot'): req(p, 3)
            if k in ('valu', 'trans', 'dot'):
                if r[0] in 'va':
                    if ins.kind == 'mfma': req(p, 2)
                    if mn.startswith(('v_readfirstlane', 'v_readlane')): req(p, 1)
                    if mn.startswith('v_permlane'): req(p, 2)
                    if 'dpp' in text or 'row_' in text: req(p, 2)
                    if k == 'trans' and isv: req(p, 1)
                else:
                    if isv: req(p, 2)
                    if ins.kind == 'vmem': req(p, 5)
                    if ins.kind in ('salu', 'ctl', 'smem'): req(p, 1)
            elif k == 'mfma':
                if ins.kind == 'mfma':
                    if r in ins.srcc and r not in ins.r:
                        same = self.mfma_d.get(r) == tuple(ins.srcc)
                        if not (same and ps == ins.passes): req(p, {8: 10, 4: 6}[ps])
                    else:
                        req(p, {8: 12, 4: 8}[ps])
                else:
                    req(p, {8: 12, 4: 8}[ps])
            elif k == 'salu':
                if r == ('s', 'm0') and ins.lds_dma: req(p, 1)
        for r in ins.w:
            lw = self.lastw.get(r)
            if lw and lw[1] == 'mfma' and ins.kind != 'mfma':
                req(lw[0], {8: 12, 4: 8}[lw[2]])
            if lw and lw[1] == 'mfma' and ins.kind == 'mfma' and not (r in ins.srcc):
                req(lw[0], {8: 12, 4: 8}[lw[2]])
            sc = self.srcc_rd.get(r)
            if sc and ins.kind != 'mfma': req(sc[0], {8: 7, 4: 3}[sc[1]])
            wr = self.wide_rd.get(r)
            if wr is not None: req(wr, 2)
        while need > 0:
            n = min(need, 16)
            self._emit(f's_nop {n - 1}', n); need -= n
        p = self.pos
        self._emit(text)
        for r in ins.w:
            self.lastw[r] = (p, 'dot' if mn.startswith('v_dot') else ins.kind, ins.passes)
            if ins.kind == 'mfma': self.mfma_d[r] = tuple(ins.w)
        if ins.kind == 'mfma':
            for r in ins.srcc: self.srcc_rd[r] = (p, ins.passes)
        if ins.kind == 'vmem':
            if ins.wide:
                for r in regs_of(split_ops(text.split(None, 1)[1])[0 if mn.startswith('buffer') else 1]):
                    self.wide_rd[r] = p
            self.vq.append(set(ins.w))
        if ins.kind == 'lds':
            self.lq.append(set(ins.w))

    def skippable(self, lines):
        p = self.pos
        for l in lines: self._I(l)
        self.pos = p

    def text(self):
        return '\n'.join(self.out) + '\n'


def vr(base, n=1):
    return f'v{base}' if n == 1 else f'v[{base}:{base + n - 1}]'
def ar(base, n=1):
    return f'a{base}' if n == 1 else f'a[{base}:{base + n - 1}]'
def sr(base, n=1):
    return f's{base}' if n == 1 else f's[{base}:{base + n - 1}]'
```

```python
from asmgen import *
from gen_k2 import HF_OFF, WF_OFF, KVP_OFF, ZP_OFF, WS_SIZE, STAMP_OFF, NKS, LOG2E, stamp_begin, stamp_end

K1_LDS = 163840
R0, R1, R2, R3, R4 = 0, 32768, 65536, 98304, 131072
M = R3
M_STAT = M
M_CS = M + 2048
M_CNT = M + 3072
M_ZERO = M + 3136
M_RST = M + 4096
M_KVX = M + 8192
M_ZX = M + 24576
M_KVL = M + 26624
M_ZL = M + 28672

XF = 128
WFR = 96
ACC = (64, 80)
PF = 6

SX, SQ, SP, SO, S1, SB1, S2, SD, SW = 4, 8, 12, 16, 20, 24, 28, 32, 36
sWAVE, sRB, sCG, sR4, sTYPE, sHT0, sONES, sLOG, sMASK, sRT = 40, 41, 42, 43, 44, 45, 46, 47, 48, 49

def gen_k1(g, stamp=False):
    I = g.I
    uid = [0]
    def lab(p):
        uid[0] += 1
        return f'k1_{p}_{uid[0]}'
    g.raw('.p2align 8')
    g.raw('k1_kernel:')
    g.reset_state()
    I('s_cmp_ge_u32 s2, 256')
    I('s_cbranch_scc1 k1_end')
    if stamp: stamp_begin(I)
    for srd, off in ((SX, 0), (SQ, 8), (SP, 16), (SO, 24), (S1, 40), (SB1, 48), (S2, 56), (SD, 80), (SW, 88)):
        I(f's_load_dwordx2 s[{srd}:{srd+1}], s[0:1], {off}')
    I('v_lshrrev_b32 v4, 6, v0')
    I('v_and_b32 v1, 63, v0')
    I(f'v_readfirstlane_b32 s{sWAVE}, v4')
    I('v_and_b32 v2, 31, v1')
    I('v_lshrrev_b32 v3, 5, v1')
    I('s_and_b32 s50, s2, 7')
    I('s_lshr_b32 s51, s2, 3')
    I('s_and_b32 s52, s50, 1'); I('s_lshl_b32 s52, s52, 3'); I('s_and_b32 s53, s51, 7')
    I(f's_add_u32 s{sRB}, s52, s53')
    I('s_lshr_b32 s52, s50, 1'); I('s_lshl_b32 s52, s52, 2'); I('s_lshr_b32 s53, s51, 3')
    I(f's_add_u32 s{sCG}, s52, s53')
    I(f's_and_b32 s{sR4}, s{sWAVE}, 3')
    I(f's_lshr_b32 s{sTYPE}, s{sWAVE}, 2')
    I(f's_lshr_b32 s52, s{sCG}, 1'); I('s_mul_i32 s52, s52, 7'); I(f's_and_b32 s53, s{sCG}, 1'); I('s_lshl_b32 s53, s53, 2')
    I(f's_add_u32 s{sHT0}, s52, s53')
    I(f's_lshl_b32 s{sRT}, s{sRB}, 2'); I(f's_add_u32 s{sRT}, s{sRT}, s{sR4}')
    I(f's_mov_b32 s{sONES}, 0x3f803f80')
    I(f's_mov_b32 s{sLOG}, 0x%x' % LOG2E)
    I(f's_mov_b32 s{sMASK}, 0xffff0000')
    I('v_lshrrev_b32 v4, 3, v1'); I('v_lshlrev_b32 v4, 10, v4')
    I('v_and_b32 v5, 7, v1'); I('v_lshrrev_b32 v6, 4, v1'); I('v_xor_b32 v5, v5, v6'); I('v_lshlrev_b32 v5, 4, v5')
    I('v_add_u32 v4, v4, v5'); I('v_xor_b32 v5, 64, v4')
    I(f's_lshl_b32 s52, s{sRB}, 17'); I(f's_lshl_b32 s53, s{sWAVE}, 14'); I('s_add_u32 s52, s52, s53')
    I('s_add_u32 s53, s52, 8192')
    I(f's_lshl_b32 s54, s{sWAVE}, 11')
    I('s_waitcnt lgkmcnt(0)')
    for srd, size in ((SX, 0x200000), (SQ, 512 * 3072), (SP, 16384), (SO, 512 * 1024), (S1, 512 * 3584), (SB1, 3584),
                      (S2, 1792 * 1024), (SD, 256), (SW, WS_SIZE)):
        I(f's_mov_b32 s{srd+2}, {size}'); I(f's_mov_b32 s{srd+3}, 0x20000')
    for kb8 in range(8):
        for e in range(2):
            I(f's_add_u32 m0, s54, {kb8*16256 + e*1024}')
            I(f'buffer_load_dwordx4 v{4+e}, s[{SX}:{SX+3}], s{52+e} offen offset:{kb8*128} lds')
    I(f's_lshl_b32 s52, s{sR4}, 12')
    I('v_lshlrev_b32 v6, 7, v2'); I('v_add_u32 v6, s52, v6')
    I('v_lshrrev_b32 v7, 1, v2'); I('v_and_b32 v7, 7, v7')
    for j in range(4):
        I(f'v_add_u32 v{8+j}, {2*j}, v3'); I(f'v_xor_b32 v{8+j}, v{8+j}, v7'); I(f'v_lshlrev_b32 v{8+j}, 4, v{8+j}')
        I(f'v_add_u32 v{8+j}, v{8+j}, v6')
    I('v_lshlrev_b32 v12, 9, v3')
    I('v_and_b32 v6, 15, v1'); I('v_lshrrev_b32 v7, 2, v6'); I('v_lshlrev_b32 v7, 6, v7'); I('v_add_u32 v12, v12, v7')
    I('v_and_b32 v7, 3, v1'); I('v_lshlrev_b32 v7, 3, v7'); I('v_add_u32 v12, v12, v7')
    I('v_and_b32 v7, 16, v1'); I('v_lshlrev_b32 v7, 1, v7'); I('v_add_u32 v12, v12, v7')
    I('v_lshlrev_b32 v15, 4, v1')
    I(f's_cmp_eq_u32 s{sTYPE}, 1')
    I('s_cbranch_scc1 k1_pathB')
    saved = (list(g.vq), list(g.lq))

    def dma_w(srd, RS, cb_s, lds_base, j0, nj):
        I(f's_mul_i32 s60, s{sR4}, {nj*16*RS}')
        I(f's_add_u32 s60, s60, s{cb_s}')
        if j0: I(f's_add_u32 s60, s60, {j0*16*RS}')
        I(f's_mul_i32 s61, s{sR4}, {nj*1024}')
        for i in range(nj):
            I(f's_add_u32 m0, s61, {lds_base + i*1024}')
            I(f'buffer_load_dwordx4 v13, s[{srd}:{srd+3}], s60 offen lds')
            if i + 1 < nj: I(f's_add_u32 s60, s60, {16*RS}')

    def side_job(idx_expr_s, vt, vh):
        I('s_and_b32 s62, s2, 15'); I('s_mul_i32 s62, s62, 9'); I(f's_add_u32 s62, s62, {idx_expr_s}')
        I('s_lshr_b32 s63, s2, 4')
        I(f'v_lshrrev_b32 v{vt+4}, 2, v2'); I(f'v_and_b32 v{vt+4}, 1, v{vt+4}'); I(f'v_lshlrev_b32 v{vt+4}, 4, v{vt+4}')
        I(f'v_lshrrev_b32 v{vt+5}, 3, v2'); I(f'v_lshlrev_b32 v{vt+5}, 2, v{vt+5}'); I(f'v_add_u32 v{vt+4}, v{vt+4}, v{vt+5}')
        I(f'v_and_b32 v{vt+5}, 3, v2'); I(f'v_add_u32 v{vt+4}, v{vt+4}, v{vt+5}')
        I('s_lshl_b32 s64, s63, 5'); I(f'v_add_u32 v{vt+4}, s64, v{vt+4}'); I(f'v_lshlrev_b32 v{vt+4}, 1, v{vt+4}')
        I('s_lshl_b32 s64, s62, 4')
        I('s_sub_u32 s65, s62, 112'); I('s_lshr_b32 s66, s65, 1'); I('s_lshl_b32 s66, s66, 5'); I('s_and_b32 s65, s65, 1')
        I('s_lshl_b32 s65, s65, 3'); I('s_add_u32 s65, s65, s66')
        I('s_cmp_lt_u32 s62, 112')
        I('s_cselect_b32 s64, s64, s65')
        I('s_cselect_b32 s65, 12, 14')
        I('s_cselect_b32 s66, 2, 1')
        I(f's_cselect_b32 s68, s{S2}, s{SO}'); I(f's_cselect_b32 s69, s{S2+1}, s{SO+1}')
        I(f's_cselect_b32 s70, s{S2+2}, s{SO+2}'); I('s_mov_b32 s71, 0x20000')
        I('s_lshl_b32 s66, s66, 12')
        I('s_lshl_b32 s64, s64, 10')
        I(f'v_lshlrev_b32 v{vt+5}, s65, v3'); I(f'v_add_u32 v{vt+4}, v{vt+4}, v{vt+5}'); I(f'v_add_u32 v{vt+4}, s64, v{vt+4}')
        for q in range(4):
            so = '0' if q < 2 else 's66'
            I(f'buffer_load_ushort v{vt+q}, v{vt+4}, s[68:71], {so} offen offset:{(2*(q&1))*1024}')
            I(f'buffer_load_ushort v{vh+q}, v{vt+4}, s[68:71], {so} offen offset:{(2*(q&1)+1)*1024}')
        I(f's_mul_i32 s67, s63, {NKS}'); I('s_add_u32 s67, s67, s62'); I('s_lshl_b32 s67, s67, 10')
        I(f's_add_u32 s67, s67, {WF_OFF}')
    def side_store(vt, vh, so):
        for q in range(4): I(f'v_lshl_or_b32 v{vt+q}, v{vh+q}, 16, v{vt+q}')
        I(f'buffer_store_dwordx4 v[{vt}:{vt+3}], v15, s[{SW}:{SW+3}], {so} offen')

    def read_x():
        for t in range(32):
            kb8, j = t >> 2, t & 3
            if t == 16:
                for jj in range(4): I(f'v_add_u32 v{8+jj}, 0x10000, v{8+jj}')
            I(f'ds_read_b128 {vr(XF+4*t,4)}, v{8+j} offset:{(kb8&3)*16384}')

    def kloop(acc, lds_base, ts, first, transposed, stat=None, cs=None):
        I(f'v_add_u32 v14, {lds_base}, v12')
        def rd(i):
            t = ts[i]; b = WFR + (i % 8) * 4
            I(f'ds_read_b64_tr_b16 {vr(b,2)}, v14 offset:{i*1024}')
            I(f'ds_read_b64_tr_b16 {vr(b+2,2)}, v14 offset:{i*1024+256}')
        for i in range(min(PF, len(ts))): rd(i)
        for i, t in enumerate(ts):
            if i + PF < len(ts): rd(i + PF)
            b = WFR + (i % 8) * 4
            c = '0' if (first and i == 0) else vr(acc, 16)
            w, x = vr(b, 4), vr(XF + 4 * t, 4)
            if transposed: I(f'v_mfma_f32_32x32x16_bf16 {vr(acc,16)}, {w}, {x}, {c}')
            else: I(f'v_mfma_f32_32x32x16_bf16 {vr(acc,16)}, {x}, {w}, {c}')
            if stat is not None:
                for q in range(4):
                    xr = XF + 4 * t + q
                    if stat == 'sum': I(f'v_dot2c_f32_bf16 v{6+(q&1)}, s{sONES}, v{xr}')
                    else: I(f'v_dot2c_f32_bf16 v{6+(q&1)}, v{xr}, v{xr}')
            if cs is not None:
                L = lab('cs')
                I(f's_cmp_lg_u32 s{sR4}, {t%4}')
                I(f's_cbranch_scc1 {L}')
                g.skippable([f'v_dot2c_f32_bf16 v{cs}, s{sONES}, v{b+q}' for q in range(4)])
                g.raw(L + ':')

    def cs_flush(csreg, slot):
        I(f'v_lshlrev_b32 v14, 2, v2')
        I(f'v_add_u32 v14, {M_CS + slot*128}, v14')
        I(f'ds_add_f32 v14, v{csreg}')
        I(f'v_mov_b32 v{csreg}, 0')

    def period_end():
        I('s_waitcnt vmcnt(0) lgkmcnt(0)')
        I('s_barrier')

    def bfr(r, t):
        I(f'v_cvt_pk_bf16_f32 v{t}, v{r}, v{r}')
        I(f'v_lshlrev_b32 v{r}, 16, v{t}')

    def stats_final():
        I(f's_lshl_b32 s52, s{sR4}, 8')
        I('v_lshlrev_b32 v16, 3, v2'); I('v_add_u32 v16, s52, v16'); I(f'v_add_u32 v16, {M_STAT}, v16')
        I('ds_read_b64 v[18:19], v16')
        I('ds_read_b64 v[20:21], v16 offset:1024')
        I('v_add_f32 v18, v18, v19'); I('v_add_f32 v20, v20, v21')
        I('v_mul_f32 v18, 0x3b000000, v18')
        I('v_mul_f32 v20, 0x3b000000, v20')
        I('v_fma_f32 v20, -v18, v18, v20')
        I('v_max_f32 v20, 0, v20')
        bfr(18, 22); bfr(20, 23)
        I('v_add_f32 v20, 0x3727c5ac, v20')
        bfr(20, 23)
        I('v_sqrt_f32 v20, v20')
        bfr(20, 23)
        I('v_rcp_f32 v6, v20')
        I('v_mul_f32 v7, v18, v6')

    def read_cs(slot, dst):
        I('v_lshlrev_b32 v14, 4, v3'); I(f'v_add_u32 v14, {M_CS + slot*128}, v14')
        for q in range(4):
            I(f'ds_read_b128 {vr(dst+4*q,4)}, v14 offset:{q*32}')

    def startup_tail(zero_lds):
        I('s_waitcnt vmcnt(0)')
        I('s_barrier')
        read_x()
        I('s_waitcnt lgkmcnt(0)')
        I('s_barrier')

    RSQ = 3072
    I('v_lshrrev_b32 v13, 2, v1'); I(f'v_mul_u32_u24 v13, {RSQ}, v13'); I('v_and_b32 v6, 3, v1'); I('v_lshlrev_b32 v6, 4, v6')
    I('v_add_u32 v13, v13, v6')
    I(f's_lshl_b32 s56, s{sCG}, 6')
    I('s_add_u32 s57, s56, 1024')
    I('s_add_u32 s58, s56, 2048')
    dma_w(SQ, RSQ, 57, R4, 0, 4)
    side_job(f's{sWAVE}', 16, 32)
    I('v_lshrrev_b32 v28, 2, v2'); I('v_and_b32 v28, 1, v28')
    I(f's_lshl_b32 s52, s{sCG}, 10')
    I('v_lshlrev_b32 v29, 9, v28'); I('v_add_u32 v29, s52, v29')
    I('v_lshlrev_b32 v30, 7, v3'); I('v_add_u32 v29, v29, v30')
    I('v_lshrrev_b32 v30, 3, v2'); I('v_lshlrev_b32 v30, 3, v30'); I('v_add_u32 v29, v29, v30')
    I('v_and_b32 v30, 3, v2'); I('v_lshlrev_b32 v30, 1, v30'); I('v_add_u32 v29, v29, v30')
    for q in range(4):
        j = 2 * q
        I(f'buffer_load_ushort v{24+q}, v29, s[{SP}:{SP+3}], 0 offen offset:{(j&3)*32+(j>>2)*256}')
        I(f'buffer_load_ushort v{36+q}, v29, s[{SP}:{SP+3}], 0 offen offset:{((j+1)&3)*32+(j>>2)*256}')
    startup_tail(True)
    dma_w(SQ, RSQ, 57, R0, 16, 4)
    dma_w(SQ, RSQ, 58, R1, 0, 8)
    side_store(16, 32, 's67')
    for q in range(4): I(f'v_mov_b32 v{16+q}, 0')
    I(f'v_add_u32 v14, {M_CS}, v15')
    I('ds_write_b128 v14, v[16:19]'); I('ds_write_b128 v14, v[16:19] offset:1024')
    for q in range(4): I(f'v_lshl_or_b32 v{24+q}, v{36+q}, 16, v{24+q}')
    I('v_cmp_eq_u32 vcc, 0, v28')
    for q in range(4):
        I(f'v_cndmask_b32 v{56+q}, 0, v{24+q}, vcc')
    for q in range(4):
        I(f'v_cndmask_b32 v{60+q}, v{24+q}, 0, vcc')
    I('v_mov_b32 v6, 0'); I('v_mov_b32 v7, 0'); I('v_mov_b32 v5, 0')
    kloop(ACC[0], R4, list(range(16)), True, True, stat='sum', cs=5)
    I('s_waitcnt vmcnt(9) lgkmcnt(0)')
    I('s_barrier')
    kloop(ACC[0], R0, list(range(16, 32)), False, True, stat='sum', cs=5)
    I('v_add_f32 v6, v6, v7')
    I(f's_lshl_b32 s52, s{sR4}, 8')
    I('v_lshlrev_b32 v16, 3, v2'); I('v_add_u32 v16, s52, v16'); I('v_lshlrev_b32 v17, 2, v3'); I('v_add_u32 v16, v16, v17')
    I(f'v_add_u32 v16, {M_STAT}, v16')
    I('ds_write_b32 v16, v6')
    cs_flush(5, 0)
    period_end()
    dma_w(SQ, RSQ, 56, R4, 0, 8)

    def features(acc, slot, PH):
        other = ACC[1] if acc == ACC[0] else ACC[0]
        read_cs(slot, 16)
        for r in range(16):
            I(f'v_mul_f32 v{16+r}, v7, v{16+r}')
            I(f'v_fma_f32 v{acc+r}, v{acc+r}, v6, -v{16+r}')
        for i in range(8):
            I(f'v_cvt_pk_bf16_f32 v{32+i}, v{acc+2*i}, v{acc+2*i+1}')
        D = other
        I(f'v_mfma_f32_32x32x16_bf16 {vr(D,16)}, v[56:59], v[32:35], 0')
        I(f'v_mfma_f32_32x32x16_bf16 {vr(D,16)}, v[60:63], v[36:39], {vr(D,16)}')
        I(f'v_max3_f32 v40, v{D}, v{D+1}, v{D+2}'); I(f'v_min3_f32 v41, v{D}, v{D+1}, v{D+2}')
        for r in range(3, 15, 2):
            I(f'v_max3_f32 v40, v40, v{D+r}, v{D+r+1}'); I(f'v_min3_f32 v41, v41, v{D+r}, v{D+r+1}')
        I(f'v_max_f32 v40, v40, v{D+15}'); I(f'v_min_f32 v41, v41, v{D+15}')
        I(f'v_mul_f32 v40, s{sLOG}, v40'); I(f'v_mul_f32 v41, s{sLOG}, v41')
        EP, EN = 16, acc
        for r in range(16):
            I(f'v_fma_f32 v{EP+r}, v{D+r}, s{sLOG}, -v40')
            I(f'v_fma_f32 v{EN+r}, -v{D+r}, s{sLOG}, v41')
        for r in range(16):
            I(f'v_exp_f32 v{EP+r}, v{EP+r}')
            I(f'v_exp_f32 v{EN+r}, v{EN+r}')
        for base, o in ((EP, 42), (EN, 44)):
            I(f'v_add_f32 v{o}, v{base}, v{base+1}'); I(f'v_add_f32 v{o+1}, v{base+2}, v{base+3}')
            for r in range(4, 16, 2):
                I(f'v_add_f32 v{o}, v{o}, v{base+r}'); I(f'v_add_f32 v{o+1}, v{o+1}, v{base+r+1}')
            I(f'v_add_f32 v{o}, v{o}, v{o+1}')
        I('v_rcp_f32 v42, v42'); I('v_rcp_f32 v44, v44')
        for r in range(16):
            I(f'v_mul_f32 v{EP+r}, v{EP+r}, v42')
            I(f'v_mul_f32 v{EN+r}, v{EN+r}, v44')
        for i in range(8):
            I(f'v_cvt_pk_bf16_f32 v{PH+i}, v{EP+2*i}, v{EP+2*i+1}')
        for i in range(8):
            I(f'v_cvt_pk_bf16_f32 v{PH+8+i}, v{EN+2*i}, v{EN+2*i+1}')

    stats_final()
    I(f's_lshl_b32 s52, s{sR4}, 8'); I(f's_add_u32 s52, s52, {M_RST}')
    I('v_lshlrev_b32 v16, 2, v2'); I('v_add_u32 v16, s52, v16')
    I('ds_write_b32 v16, v6'); I('ds_write_b32 v16, v7 offset:128')
    features(ACC[0], 0, 32)
    I('v_and_b32 v16, 15, v2'); I('v_lshrrev_b32 v17, 4, v2'); I('v_xor_b32 v17, v17, v3'); I('v_lshlrev_b32 v17, 6, v17')
    I('v_add_u32 v16, v16, v17')
    I('v_mov_b32 v18, 0x3f80'); I('v_mov_b32 v19, 0x3f800000')
    for mq in range(8):
        I(f'v_cmp_eq_u32 vcc, {2*mq}, v16')
        I(f'v_cndmask_b32 v{48+mq}, 0, v18, vcc')
        I(f'v_cmp_eq_u32 vcc, {2*mq+1}, v16')
        I(f'v_cndmask_b32 v{48+mq}, v{48+mq}, v19, vcc')
    for tl in range(2):
        D = ACC[tl]
        I(f'v_mfma_f32_32x32x16_bf16 {vr(D,16)}, {vr(32+8*tl,4)}, v[48:51], 0')
        I(f'v_mfma_f32_32x32x16_bf16 {vr(D,16)}, {vr(36+8*tl,4)}, v[52:55], {vr(D,16)}')
    for tl in range(2):
        D = ACC[tl]
        I(f'v_add_f32 v{8+tl}, v{D}, v{D+1}'); I(f'v_add_f32 v{10+tl}, v{D+2}, v{D+3}')
        for r in range(4, 16, 2):
            I(f'v_add_f32 v{8+tl}, v{8+tl}, v{D+r}'); I(f'v_add_f32 v{10+tl}, v{10+tl}, v{D+r+1}')
        I(f'v_add_f32 v{8+tl}, v{8+tl}, v{10+tl}')
        for i in range(8):
            I(f'v_cvt_pk_bf16_f32 v{16+8*tl+i}, v{D+2*i}, v{D+2*i+1}')
    kloop(ACC[0], R1, list(range(32)), True, False, cs=5)
    cs_flush(5, 1)
    period_end()
    I(f's_lshl_b32 s52, s{sR4}, 8'); I(f's_add_u32 s52, s52, {M_RST}')
    I('v_lshlrev_b32 v14, 4, v3'); I('v_add_u32 v14, s52, v14')
    for q in range(4):
        I(f'ds_read_b128 {vr(32+4*q,4)}, v14 offset:{q*32}')
        I(f'ds_read_b128 {vr(80+4*q,4)}, v14 offset:{128+q*32}')
    I('v_lshlrev_b32 v14, 2, v2'); I(f'v_add_u32 v14, {M_CS+128}, v14')
    I('ds_read_b32 v10, v14')
    A0 = ACC[0]
    for r in range(16):
        I(f'v_mul_f32 v{80+r}, v{80+r}, v10')
        I(f'v_fma_f32 v{A0+r}, v{A0+r}, v{32+r}, -v{80+r}')
    for i in range(8):
        I(f'v_cvt_pk_bf16_f32 v{48+i}, v{A0+2*i}, v{A0+2*i+1}')
    for tl, T in ((0, 32), (1, 80)):
        I(f'v_mfma_f32_32x32x16_bf16 {vr(T,16)}, {vr(16+8*tl,4)}, v[48:51], 0')
        I(f'v_mfma_f32_32x32x16_bf16 {vr(T,16)}, {vr(20+8*tl,4)}, v[52:55], {vr(T,16)}')
    I('v_and_b32 v10, 16, v1'); I('v_cmp_ne_u32 vcc, 0, v10')
    for tl, T in ((0, 32), (1, 80)):
        for j in range(8):
            I(f'v_cndmask_b32 v{A0+8*tl+j}, v{T+j}, v{T+8+j}, vcc')
    I(f's_lshl_b32 s52, s{sR4}, 12'); I(f's_add_u32 s52, s52, {M_KVX}')
    I('v_add_u32 v14, s52, v15')
    for q in range(4):
        I(f'ds_write_b128 v14, {vr(A0+4*q,4)} offset:{q*1024}')
    I(f's_lshl_b32 s52, s{sR4}, 9'); I(f's_add_u32 s52, s52, {M_ZX}')
    I('v_lshlrev_b32 v11, 3, v1'); I('v_add_u32 v14, s52, v11')
    I('ds_write_b64 v14, v[8:9]')
    I('s_waitcnt lgkmcnt(0)')
    I(f'v_mov_b32 v14, {M_CNT}'); I('v_mov_b32 v10, 1')
    I('s_mov_b64 exec, 1')
    I('ds_add_rtn_u32 v10, v14, v10')
    I('s_waitcnt lgkmcnt(0)')
    I('s_mov_b64 exec, -1')
    I('v_readfirstlane_b32 s52, v10')
    I('s_cmp_lg_u32 s52, 3')
    I('s_cbranch_scc1 k1_nopub')
    sv = (list(g.vq), list(g.lq))
    I(f'v_add_u32 v14, {M_KVX}, v15')
    PB = (16, 32, 64, 80)
    for w in range(4):
        for q in range(4):
            I(f'ds_read_b128 {vr(PB[w]+4*q,4)}, v14 offset:{w*4096+q*1024}')
    I(f'v_add_u32 v14, {M_ZX}, v11')
    for w in range(4):
        I(f'ds_read_b64 {vr(48+2*w,2)}, v14 offset:{w*512}')
    for r in range(16):
        I(f'v_add_f32 v{16+r}, v{16+r}, v{32+r}')
        I(f'v_add_f32 v{80+r}, v{80+r}, v{64+r}')
        I(f'v_add_f32 v{16+r}, v{16+r}, v{80+r}')
    for e in range(2):
        I(f'v_add_f32 v{48+e}, v{48+e}, v{50+e}'); I(f'v_add_f32 v{52+e}, v{52+e}, v{54+e}'); I(f'v_add_f32 v{48+e}, v{48+e}, v{52+e}')
    I(f's_lshl_b32 s52, s{sCG}, 4'); I(f's_add_u32 s52, s52, s{sRB}')
    I('s_lshl_b32 s53, s52, 12'); I(f's_add_u32 s53, s53, {KVP_OFF}')
    for q in range(4):
        I(f'buffer_store_dwordx4 {vr(16+4*q,4)}, v15, s[{SW}:{SW+3}], s53 offen offset:{q*1024} sc1')
    I('s_lshl_b32 s53, s52, 9'); I(f's_add_u32 s53, s53, {ZP_OFF}')
    I(f'buffer_store_dwordx2 v[48:49], v11, s[{SW}:{SW+3}], s53 offen sc1')
    I('s_waitcnt vmcnt(0)')
    I(f's_lshl_b32 s52, s{sCG}, 2'); I('v_mov_b32 v14, s52'); I('v_mov_b32 v10, 1')
    I('s_mov_b64 exec, 1')
    I(f'buffer_atomic_add v10, v14, s[{SD}:{SD+3}], 0 offen sc1')
    I('s_mov_b64 exec, -1')
    g.label('k1_nopub')
    g.vq, g.lq = list(sv[0]), list(sv[1])
    kloop(ACC[0], R4, list(range(32)), True, True, cs=5)
    cs_flush(5, 2)
    period_end()
    features(ACC[0], 2, 32)
    I('s_waitcnt vmcnt(0) lgkmcnt(0)')
    I('s_barrier')
    I(f's_lshl_b32 s52, s{sCG}, 2'); I('v_mov_b32 v14, s52')
    I('s_mov_b32 s53, 0')
    g.label('k1_poll')
    I(f'buffer_load_dword v10, v14, s[{SD}:{SD+3}], 0 offen sc1')
    I('s_waitcnt vmcnt(0)')
    I('v_readfirstlane_b32 s52, v10')
    I('s_add_u32 s53, s53, 1')
    I('s_cmp_ge_u32 s52, 16')
    I('s_cbranch_scc1 k1_polled')
    I('s_sleep 1')
    I('s_cmp_lt_u32 s53, 0x400000')
    I('s_cbranch_scc1 k1_poll')
    g.label('k1_polled')
    I(f's_lshl_b32 s52, s{sCG}, 16'); I(f's_lshl_b32 s53, s{sR4}, 10'); I('s_add_u32 s52, s52, s53'); I(f's_add_u32 s52, s52, {KVP_OFF}')
    I(f's_lshl_b32 s53, s{sCG}, 13'); I(f's_add_u32 s53, s53, {ZP_OFF}')
    for rbp in range(16):
        I(f'buffer_load_dwordx4 {vr(128+4*rbp,4)}, v15, s[{SW}:{SW+3}], s52 offen sc1')
        I(f'buffer_load_dwordx2 {vr(192+2*rbp,2)}, v11, s[{SW}:{SW+3}], s53 offen offset:{(rbp%8)*512} sc1')
        I('s_add_u32 s52, s52, 4096')
        if rbp == 7: I('s_add_u32 s53, s53, 4096')
    for st in (8, 4, 2, 1):
        for i in range(st):
            for e in range(4): I(f'v_add_f32 v{128+4*i+e}, v{128+4*i+e}, v{128+4*(i+st)+e}')
            for e in range(2): I(f'v_add_f32 v{192+2*i+e}, v{192+2*i+e}, v{192+2*(i+st)+e}')
    I('v_cvt_pk_bf16_f32 v136, v128, v129'); I('v_cvt_pk_bf16_f32 v137, v130, v131')
    I(f's_lshl_b32 s52, s{sR4}, 4'); I(f's_add_u32 s52, s52, {M_KVL}')
    I('v_lshlrev_b32 v14, 6, v2'); I('v_lshlrev_b32 v10, 3, v3'); I('v_add_u32 v14, v14, v10'); I('v_add_u32 v14, s52, v14')
    I('ds_write_b64 v14, v[136:137]')
    for e in range(2):
        I(f'v_mov_b32 v{196+e}, v{192+e}')
    for e in range(2):
        I(f'v_permlane32_swap_b32 v{192+e}, v{196+e}')
        I(f'v_add_f32 v{192+e}, v{192+e}, v{196+e}')
    I('v_cvt_pk_bf16_f32 v198, v192, v193')
    I(f's_lshl_b32 s52, s{sR4}, 7'); I(f's_add_u32 s52, s52, {M_ZL}')
    I('v_lshrrev_b32 v14, 4, v2'); I('v_lshlrev_b32 v14, 6, v14'); I('v_and_b32 v10, 15, v2'); I('v_lshlrev_b32 v10, 1, v10')
    I('v_add_u32 v14, v14, v10'); I('v_add_u32 v14, s52, v14')
    I('ds_write_b16 v14, v198'); I('ds_write_b16_d16_hi v14, v198 offset:32')
    I('s_waitcnt lgkmcnt(0)')
    I(f'v_mov_b32 v14, {M_CNT+4}'); I('v_mov_b32 v10, 1')
    I('s_mov_b64 exec, 1')
    I('ds_add_u32 v14, v10')
    I('s_mov_b64 exec, -1')
    I('s_mov_b32 s53, 0')
    g.label('k1_spin')
    I('ds_read_b32 v10, v14')
    I('s_waitcnt lgkmcnt(0)')
    I('v_readfirstlane_b32 s52, v10')
    I('s_add_u32 s53, s53, 1')
    I('s_cmp_ge_u32 s52, 4')
    I('s_cbranch_scc1 k1_spun')
    I('s_cmp_lt_u32 s53, 0x400000')
    I('s_cbranch_scc1 k1_spin')
    g.label('k1_spun')
    I('v_lshrrev_b32 v16, 2, v2'); I('v_and_b32 v16, 1, v16')
    I('v_lshrrev_b32 v17, 3, v2'); I('v_lshlrev_b32 v17, 2, v17'); I('v_and_b32 v18, 3, v2'); I('v_add_u32 v17, v17, v18')
    I('v_lshlrev_b32 v18, 4, v16'); I('v_add_u32 v17, v17, v18'); I('v_lshlrev_b32 v17, 6, v17'); I(f'v_add_u32 v17, {M_KVL}, v17')
    I(f's_lshl_b32 s52, s{sR4}, 7'); I(f's_add_u32 s52, s52, {M_ZL}')
    I('v_lshlrev_b32 v18, 6, v3'); I('v_add_u32 v18, s52, v18')
    I(f'v_mov_b32 v19, {M_ZERO}')
    I('v_cmp_eq_u32 vcc, v16, v3')
    I('v_cndmask_b32 v17, v19, v17, vcc'); I('v_cndmask_b32 v18, v19, v18, vcc')
    for m in range(4):
        I(f'ds_read_b128 {vr(128+4*m,4)}, v17 offset:{m*16}')
        I(f'ds_read_b128 {vr(144+4*m,4)}, v18 offset:{m*16}')
    for m in range(4):
        I(f'v_mfma_f32_32x32x16_bf16 v[64:79], {vr(128+4*m,4)}, {vr(32+4*m,4)}, {"0" if m==0 else "v[64:79]"}')
        I(f'v_mfma_f32_32x32x16_bf16 v[80:95], {vr(144+4*m,4)}, {vr(32+4*m,4)}, {"0" if m==0 else "v[80:95]"}')
    I('v_add_f32 v16, 0x358637bd, v80')
    I('v_rcp_f32 v16, v16')
    for r in range(16): I(f'v_mul_f32 v{64+r}, v{64+r}, v16')
    for i in range(8): I(f'v_cvt_pk_bf16_f32 v{20+i}, v{64+2*i}, v{64+2*i+1}')
    I(f's_mul_i32 s52, s{sRT}, {NKS}'); I(f's_lshl_b32 s53, s{sCG}, 1'); I('s_add_u32 s52, s52, s53'); I('s_add_u32 s52, s52, 112')
    I('s_lshl_b32 s52, s52, 10')
    I(f'buffer_store_dwordx4 v[20:23], v15, s[{SW}:{SW+3}], s52 offen')
    I(f'buffer_store_dwordx4 v[24:27], v15, s[{SW}:{SW+3}], s52 offen offset:1024')
    if stamp: stamp_end(I, sWAVE, SW, STAMP_OFF)
    I('s_endpgm')

    g.label('k1_pathB')
    g.vq, g.lq = list(saved[0]), list(saved[1])
    RS1 = 3584
    I('v_lshrrev_b32 v13, 2, v1'); I(f'v_mul_u32_u24 v13, {RS1}, v13'); I('v_and_b32 v6, 3, v1'); I('v_lshlrev_b32 v6, 4, v6')
    I('v_add_u32 v13, v13, v6')
    for i in range(4):
        I(f's_lshl_b32 s{56+i}, s{sHT0}, 6')
        if i: I(f's_add_u32 s{56+i}, s{56+i}, {64*i}')
    dma_w(S1, RS1, 56, R4 + 16384, 0, 4)
    side_job(f's{sWAVE}', 16, 32)
    I('s_mov_b32 s72, s67')
    side_job('8', 24, 36)
    startup_tail(False)
    dma_w(S1, RS1, 56, R0 + 16384, 16, 4)
    dma_w(S1, RS1, 57, R2, 0, 8)
    side_store(16, 32, 's72')
    side_store(24, 36, 's67')
    I('v_mov_b32 v6, 0'); I('v_mov_b32 v7, 0'); I('v_mov_b32 v5, 0')
    kloop(ACC[0], R4 + 16384, list(range(16)), True, True, stat='sq', cs=5)
    I('s_waitcnt vmcnt(10) lgkmcnt(0)')
    I('s_barrier')
    kloop(ACC[0], R0 + 16384, list(range(16, 32)), False, True, stat='sq', cs=5)
    I('v_add_f32 v6, v6, v7')
    I(f's_lshl_b32 s52, s{sR4}, 8')
    I('v_lshlrev_b32 v16, 3, v2'); I('v_add_u32 v16, s52, v16'); I('v_lshlrev_b32 v17, 2, v3'); I('v_add_u32 v16, v16, v17')
    I(f'v_add_u32 v16, {M_STAT+1024}, v16')
    I('ds_write_b32 v16, v6')
    cs_flush(5, 4)
    period_end()
    dma_w(S1, RS1, 58, R0, 0, 8)
    I('v_lshlrev_b32 v11, 3, v3')

    def h_epi(i):
        acc = ACC[i & 1]
        for q in range(4):
            I(f'buffer_load_dwordx2 {vr(32+2*q,2)}, v11, s[{SB1}:{SB1+3}], s{56+i} offen offset:{q*16}')
        read_cs(4 + i, 16)
        for r in range(16):
            b = 32 + (r >> 1)
            if r & 1: I(f'v_and_b32 v{40+(r&3)}, s{sMASK}, v{b}')
            else: I(f'v_lshlrev_b32 v{40+(r&3)}, 16, v{b}')
            I(f'v_fma_f32 v{16+r}, v7, v{16+r}, -v{40+(r&3)}')
            I(f'v_fma_f32 v{acc+r}, v{acc+r}, v6, -v{16+r}')
            I(f'v_max_f32 v{acc+r}, 0, v{acc+r}')
            I(f'v_mul_f32 v{acc+r}, v{acc+r}, v{acc+r}')
        for k in range(8):
            I(f'v_cvt_pk_bf16_f32 v{48+k}, v{acc+2*k}, v{acc+2*k+1}')
        I(f's_mul_i32 s52, s{sRT}, {NKS}'); I(f's_lshl_b32 s53, s{sHT0}, 1'); I('s_add_u32 s52, s52, s53')
        I(f's_add_u32 s52, s52, {2*i}'); I('s_lshl_b32 s52, s52, 10')
        I(f'buffer_store_dwordx4 v[48:51], v15, s[{SW}:{SW+3}], s52 offen')
        I(f'buffer_store_dwordx4 v[52:55], v15, s[{SW}:{SW+3}], s52 offen offset:1024')

    kloop(ACC[1], R2, list(range(32)), True, True, cs=5)
    cs_flush(5, 5)
    stats_final()
    h_epi(0)
    period_end()
    I(f's_and_b32 s52, s{sCG}, 1'); I('s_cmp_eq_u32 s52, 1'); I('s_cbranch_scc1 k1_b_nodma')
    dma_w(S1, RS1, 59, R1, 0, 8)
    g.label('k1_b_nodma')
    g.forget_pending()
    kloop(ACC[0], R0, list(range(32)), True, True, cs=5)
    cs_flush(5, 6)
    h_epi(1)
    period_end()
    I(f's_and_b32 s52, s{sCG}, 1'); I('s_cmp_eq_u32 s52, 1'); I('s_cbranch_scc1 k1_b_no3')
    kloop(ACC[1], R1, list(range(32)), True, True, cs=5)
    cs_flush(5, 7)
    I('s_waitcnt lgkmcnt(0)')
    g.label('k1_b_no3')
    h_epi(2)
    period_end()
    I(f's_and_b32 s52, s{sCG}, 1'); I('s_cmp_eq_u32 s52, 1'); I('s_cbranch_scc1 k1_b_done')
    h_epi(3)
    g.label('k1_b_done')
    if stamp: stamp_end(I, sWAVE, SW, STAMP_OFF)
    g.raw('k1_end:')
    I('s_endpgm')

K1_DESC = """
.amdhsa_kernel k1_kernel
  .amdhsa_next_free_vgpr 256
  .amdhsa_next_free_sgpr 100
  .amdhsa_accum_offset 256
  .amdhsa_group_segment_fixed_size 0
  .amdhsa_kernarg_size 96
  .amdhsa_user_sgpr_count 2
  .amdhsa_user_sgpr_kernarg_segment_ptr 1
  .amdhsa_system_sgpr_workgroup_id_x 1
  .amdhsa_float_denorm_mode_32 3
.end_amdhsa_kernel
"""
```

```python
from asmgen import *

HF_OFF = 0
WF_OFF = 0xA00000
KVP_OFF = 0xD00000
ZP_OFF = 0xE00000
FLAG_OFF = 0xE80000
WS_SIZE = 0xF00000
STAMP_OFF = 0xF00000
NKS = 144
LOG2E = 0x3fb8aa3b
K2_LDS = 163840

def stamp_begin(I):
    I('s_memrealtime s[90:91]'); I('s_memtime s[92:93]')

def stamp_end(I, wave_sreg, srd, off, vt=8):
    I('s_waitcnt vmcnt(0)')
    I('s_memrealtime s[94:95]'); I('s_memtime s[96:97]')
    I('s_waitcnt lgkmcnt(0)')
    I('s_sub_u32 s96, s96, s92')
    I(f'v_mov_b32 v{vt}, s90'); I(f'v_mov_b32 v{vt+1}, s94'); I(f'v_mov_b32 v{vt+2}, s96'); I('s_sub_u32 s88, s88, s92'); I(f'v_mov_b32 v{vt+3}, s88')
    I('s_lshl_b32 s98, s2, 3'); I(f's_add_u32 s98, s98, s{wave_sreg}'); I('s_lshl_b32 s98, s98, 4')
    I('s_add_u32 s98, s98, 0x%x' % off)
    I(f'v_mov_b32 v{vt+4}, s98')
    I(f's_mov_b32 s{srd+2}, 0x1000000')
    I(f'buffer_store_dwordx4 v[{vt}:{vt+3}], v{vt+4}, s[{srd}:{srd+3}], 0 offen')

def gen_k2(g, NS=9, stamp=False, mode=0, ks=4):
    I = g.I
    g.raw('.p2align 8')
    g.raw('k2_kernel:')
    g.reset_state()
    I('s_cmp_ge_u32 s2, 256')
    I('s_cbranch_scc1 k2_end')
    if stamp: stamp_begin(I)
    I('s_load_dwordx2 s[8:9], s[0:1], 0')
    I('s_load_dwordx4 s[36:39], s[0:1], 64')
    I('s_load_dwordx2 s[20:21], s[0:1], 88')
    I('v_lshrrev_b32 v2, 6, v0')
    I('v_and_b32 v3, 63, v0')
    I('v_readfirstlane_b32 s24, v2')
    I('v_lshlrev_b32 v1, 4, v3')
    I('s_and_b32 s25, s2, 7')
    I('s_lshl_b32 s25, s25, 2')
    I('s_lshr_b32 s26, s2, 6')
    I('s_add_u32 s25, s25, s26')
    I('s_lshr_b32 s26, s2, 3')
    I('s_and_b32 s26, s26, 7')
    if mode == 1:
        I('s_mov_b32 s25, 0'); I('s_mov_b32 s26, 0')
    if mode == 2:
        I('s_mov_b32 s26, 0')
    if mode == 3:
        I('s_mov_b32 s25, 0')
    I('s_lshl_b32 s25, s25, 1')
    I('s_lshl_b32 s26, s26, 1')
    I('s_lshr_b32 s27, s24, 1')
    I('s_and_b32 s28, s27, 1')
    I('s_add_u32 s29, s25, s28')
    I('s_add_u32 s30, s26, s28')
    I('s_cmp_ge_u32 s27, 2')
    I('s_cselect_b32 s29, s30, s29')
    I('s_cselect_b32 s31, 0x%x, %d' % (WF_OFF, HF_OFF))
    I(f's_mul_i32 s40, s29, {NKS*1024}')
    I('s_add_u32 s40, s40, s31')
    I('s_and_b32 s31, s24, 1')
    I(f's_mul_i32 s31, s31, {ks*512}')
    I('s_add_u32 s40, s40, s31')
    I(f's_mul_i32 s41, s24, {ks*512}')
    I('s_and_b32 s42, s24, 3')
    I('s_lshr_b32 s43, s42, 1')
    I('s_and_b32 s44, s42, 1')
    I('s_lshr_b32 s45, s24, 2')
    I('s_waitcnt lgkmcnt(0)')
    I('s_mov_b32 s22, %d' % WS_SIZE)
    I('s_mov_b32 s23, 0x20000')
    I('s_mov_b32 s10, 0x200000')
    I('s_mov_b32 s11, 0x20000')
    I('s_mov_b32 s12, s36'); I('s_mov_b32 s13, s37'); I('s_mov_b32 s14, 1024'); I('s_mov_b32 s15, 0x20000')
    I('s_mov_b32 s16, s38'); I('s_mov_b32 s17, s39'); I('s_mov_b32 s18, 0x200000'); I('s_mov_b32 s19, 0x20000')
    KS = ks
    NST = NKS // KS
    SB = KS * 4096
    ND = KS // 2
    def issue(s):
        slot = s % NS
        I(f's_add_u32 m0, s41, {slot*SB}')
        for d in range(ND):
            I(f'buffer_load_dwordx4 v1, s[20:23], s40 offen offset:{d*1024} lds')
        I(f's_add_u32 s40, s40, {KS*1024}')
    I('v_and_b32 v4, 31, v3')
    I('v_lshrrev_b32 v5, 5, v3')
    I('s_add_u32 s35, s25, s43')
    I('s_lshl_b32 s35, s35, 5')
    I('v_add_u32 v4, s35, v4')
    I('v_lshlrev_b32 v4, 10, v4')
    I('v_lshlrev_b32 v5, 5, v5')
    I('s_add_u32 s35, s26, s44')
    I('s_lshl_b32 s35, s35, 6')
    I('s_lshl_b32 s34, s45, 4')
    I('s_add_u32 s35, s35, s34')
    I('v_add_u32 v5, s35, v5')
    I('v_add_u32 v4, v4, v5')
    I('buffer_load_dwordx4 v[8:11], v4, s[8:11], 0 offen')
    I('buffer_load_dwordx4 v[12:15], v5, s[12:15], 0 offen')
    for s in range(NS - 1): issue(s)
    I(f's_mul_i32 s35, s43, {KS*1024}')
    I(f's_mul_i32 s34, s45, {ND*1024}')
    I('s_add_u32 s35, s35, s34')
    I('v_add_u32 v16, s35, v1')
    I(f's_mul_i32 s35, s44, {KS*1024}')
    I('s_add_u32 s35, s35, s34')
    I(f's_add_u32 s35, s35, {2*KS*1024}')
    I('v_add_u32 v19, s35, v1')
    GRP = 65536 // SB
    for a in (1, 2):
        I(f'v_add_u32 v{16+a}, {a*GRP*SB}, v16')
        I(f'v_add_u32 v{19+a}, {a*GRP*SB}, v19')
    I('s_xor_b32 s35, s24, 4')
    I('s_lshl_b32 s35, s35, 12')
    I('v_add_u32 v22, s35, v1')
    I('s_lshl_b32 s35, s24, 12')
    I('v_add_u32 v23, s35, v1')
    FB = 128
    def fr(buf, kk, hw): return FB + buf * ND * 8 + kk * 8 + hw * 4
    A1, A2 = 64, 80
    NH = 112 // KS
    def mfmas(s):
        acc = A1 if s < NH else A2
        for kk in range(ND):
            c = '0' if (s in (0, NH) and kk == 0) else vr(acc, 16)
            if mode in (11, 12) and 1 < s < NST - 2: continue
            I(f'v_mfma_f32_32x32x16_bf16 {vr(acc,16)}, {vr(fr(s&1,kk,1),4)}, {vr(fr(s&1,kk,0),4)}, {c}')
    for s in range(NST):
        younger = min(NS - 1, NST - s) - 1
        I(f's_waitcnt vmcnt({ND*younger}) lgkmcnt(0)')
        I('s_barrier')
        slot = s % NS
        a, b = slot // GRP, slot % GRP
        for kk in range(ND):
            if mode in (12, 13) and 1 < s < NST - 2: continue
            I(f'ds_read_b128 {vr(fr(s&1,kk,0),4)}, v{16+a} offset:{b*SB+kk*1024}')
            I(f'ds_read_b128 {vr(fr(s&1,kk,1),4)}, v{19+a} offset:{b*SB+kk*1024}')
        if s + NS - 1 < NST: issue(s + NS - 1)
        if s > 0: mfmas(s - 1)
    mfmas(NST - 1)
    if stamp: I('s_memtime s[88:89]')
    I('s_barrier')
    I('s_mov_b32 s35, 0xffff0000')
    I('s_mov_b32 s34, 0x%x' % (LOG2E | 0x80000000))
    I('s_cmp_eq_u32 s45, 1')
    I('s_cbranch_scc1 k2_kg1')
    saved = (list(g.vq), list(g.lq))
    for kg in range(2):
        if kg == 1:
            g.label('k2_kg1')
            g.vq, g.lq = list(saved[0]), list(saved[1])
        keep, give = 8 * kg, 8 * (1 - kg)
        for a, acc in enumerate((A1, A2)):
            for q in range(2):
                I(f'ds_write_b128 v22, {vr(acc+give+4*q,4)} offset:{(a*2+q)*1024}')
        I('s_waitcnt lgkmcnt(0)')
        I('s_barrier')
        T = 96
        for a in range(2):
            for q in range(2):
                I(f'ds_read_b128 {vr(T+a*8+4*q,4)}, v23 offset:{(a*2+q)*1024}')
        for r in range(8):
            I(f'v_add_f32 v{A1+keep+r}, v{A1+keep+r}, v{T+r}')
        for r in range(8):
            I(f'v_add_f32 v{A2+keep+r}, v{A2+keep+r}, v{T+8+r}')
        U = 112
        def rnd(a, b, tmp):
            I(f'v_cvt_pk_bf16_f32 v{tmp}, v{a}, v{b}')
            I(f'v_lshlrev_b32 v{a}, 16, v{tmp}')
            I(f'v_and_b32 v{b}, s35, v{tmp}')
        P = [(A1 + keep + 2 * i, A1 + keep + 2 * i + 1, A2 + keep + 2 * i, A2 + keep + 2 * i + 1,
              U + 4 * i, U + 4 * i + 1, U + 4 * i + 2, U + 4 * i + 3, i) for i in range(4)]
        for (a, b, c, d, t0, t1, t2, t3, i) in P: rnd(a, b, t0)
        for (a, b, c, d, t0, t1, t2, t3, i) in P:
            I(f'v_lshlrev_b32 v{t1}, 16, v{12+i}')
            I(f'v_and_b32 v{t2}, s35, v{12+i}')
            I(f'v_add_f32 v{a}, v{a}, v{t1}')
            I(f'v_add_f32 v{b}, v{b}, v{t2}')
        for (a, b, c, d, t0, t1, t2, t3, i) in P: rnd(a, b, t0)
        for (a, b, c, d, t0, t1, t2, t3, i) in P:
            I(f'v_mul_f32 v{t1}, s34, v{a}')
            I(f'v_mul_f32 v{t2}, s34, v{b}')
            I(f'v_exp_f32 v{t1}, v{t1}')
            I(f'v_exp_f32 v{t2}, v{t2}')
        for (a, b, c, d, t0, t1, t2, t3, i) in P:
            I(f'v_add_f32 v{t1}, 1.0, v{t1}')
            I(f'v_add_f32 v{t2}, 1.0, v{t2}')
            I(f'v_rcp_f32 v{t1}, v{t1}')
            I(f'v_rcp_f32 v{t2}, v{t2}')
        for (a, b, c, d, t0, t1, t2, t3, i) in P:
            I(f'v_mul_f32 v{a}, v{a}, v{t1}')
            I(f'v_mul_f32 v{b}, v{b}, v{t2}')
            rnd(c, d, t3)
        for (a, b, c, d, t0, t1, t2, t3, i) in P: rnd(a, b, t0)
        for (a, b, c, d, t0, t1, t2, t3, i) in P:
            I(f'v_mul_f32 v{a}, v{a}, v{c}')
            I(f'v_mul_f32 v{b}, v{b}, v{d}')
        for (a, b, c, d, t0, t1, t2, t3, i) in P: rnd(a, b, t0)
        for (a, b, c, d, t0, t1, t2, t3, i) in P:
            I(f'v_lshlrev_b32 v{t1}, 16, v{8+i}')
            I(f'v_and_b32 v{t2}, s35, v{8+i}')
            I(f'v_add_f32 v{a}, v{a}, v{t1}')
            I(f'v_add_f32 v{b}, v{b}, v{t2}')
            I(f'v_cvt_pk_bf16_f32 v{24+i}, v{a}, v{b}')
        I('buffer_store_dwordx4 v[24:27], v4, s[16:19], 0 offen')
        if stamp: stamp_end(I, 24, 20, STAMP_OFF + 0x10000)
        if kg == 0: I('s_endpgm')
    g.raw('k2_end:')
    I('s_endpgm')

K2_DESC = """
.amdhsa_kernel k2_kernel
  .amdhsa_next_free_vgpr 192
  .amdhsa_next_free_sgpr 100
  .amdhsa_accum_offset 192
  .amdhsa_group_segment_fixed_size 0
  .amdhsa_kernarg_size 96
  .amdhsa_user_sgpr_count 2
  .amdhsa_user_sgpr_kernarg_segment_ptr 1
  .amdhsa_system_sgpr_workgroup_id_x 1
  .amdhsa_float_denorm_mode_32 3
.end_amdhsa_kernel
"""
```

```python
import sys; sys.path.insert(0,"dev")
import gen_k1, gen_k2
from asmgen import Gen
NAME = "recurrent_scan__linear_kernel_hedgehog__dense_activation_squared_relu__prompt"
def build_text(stamp=False, **kw):
    hdr = open(f"cdna_kernels/{NAME}.s.ref").read().split("\n")
    head = [l for l in hdr if l.startswith(";") and "@launch" not in l and "Override launch" not in l and "grid=ceil" not in l]
    g = Gen()
    for l in head: g.raw(l)
    g.raw('; @launch kernel=k1_kernel grid=(256,1,1) block=(512,1,1) lds=%d' % gen_k1.K1_LDS)
    g.raw('; @launch kernel=k2_kernel grid=(256,1,1) block=(512,1,1) lds=%d' % gen_k2.K2_LDS)
    g.raw('.amdgcn_target "amdgcn-amd-amdhsa--gfx950"'); g.raw('.text')
    g.raw('.globl k1_kernel\n.type k1_kernel,@function\n.globl k2_kernel\n.type k2_kernel,@function')
    gen_k1.gen_k1(g, stamp=stamp, **kw)
    gen_k2.gen_k2(g, 5, stamp=stamp, ks=8)
    g.raw('.section .rodata,"a"'); g.raw('.p2align 6'); g.raw(gen_k1.K1_DESC.strip()); g.raw('.p2align 6'); g.raw(gen_k2.K2_DESC.strip())
    return g.text()
if __name__ == "__main__":
    open(f"cdna_kernels/{NAME}.s", "w").write(build_text(False))
    print("written")
```

```python
import re

_REG = re.compile(r'\b([vas])(\d+)\b|\b([vas])\[(\d+):(\d+)\]')

def regs_of(tok):
    out = []
    for m in _REG.finditer(tok):
        if m.group(1):
            out.append((m.group(1), int(m.group(2))))
        else:
            for i in range(int(m.group(4)), int(m.group(5)) + 1):
                out.append((m.group(3), i))
    if re.search(r'\bvcc\b', tok): out.append(('s', 'vcc'))
    if re.search(r'\bm0\b', tok): out.append(('s', 'm0'))
    if re.search(r'\bexec\b', tok): out.append(('s', 'exec'))
    return out

def split_ops(s):
    ops, depth, cur = [], 0, ''
    for ch in s:
        if ch in '[(': depth += 1
        if ch in '])': depth -= 1
        if ch == ',' and depth == 0:
            ops.append(cur.strip()); cur = ''
        else:
            cur += ch
    if cur.strip(): ops.append(cur.strip())
    return ops

TRANS = ('v_exp_f32', 'v_log_f32', 'v_rcp_f32', 'v_rsq_f32', 'v_sqrt_f32', 'v_sin_f32', 'v_cos_f32')

class Ins:
    __slots__ = ('text', 'mn', 'kind', 'w', 'r', 'srcc', 'passes', 'wide', 'lds_dma')

def parse(text):
    t = text.strip()
    ins = Ins(); ins.text = t
    parts = t.split(None, 1)
    mn = parts[0]; ins.mn = mn
    rest = parts[1] if len(parts) > 1 else ''
    ops = split_ops(rest)
    ins.w, ins.r, ins.srcc, ins.passes, ins.wide, ins.lds_dma = [], [], [], 0, False, False
    allr = lambda lst: [x for o in lst for x in regs_of(o)]
    if mn.startswith('v_mfma'):
        ins.kind = 'mfma'
        ins.w = regs_of(ops[0]); ins.r = allr(ops[1:3]); ins.srcc = regs_of(ops[3])
        ins.passes = 8 if '32x32' in mn else 4
    elif mn.startswith('v_cmp'):
        ins.kind = 'valu'; ins.w = regs_of(ops[0]); ins.r = allr(ops[1:])
    elif mn.startswith('v_permlane') and 'swap' in mn:
        ins.kind = 'valu'; ins.w = allr(ops); ins.r = allr(ops)
    elif mn.startswith('v_'):
        ins.kind = 'trans' if mn.replace('_e32', '').replace('_e64', '') in TRANS else 'valu'
        ins.w = regs_of(ops[0]); ins.r = allr(ops[1:])
        if mn.startswith(('v_fmac', 'v_dot2c', 'v_pk_fmac')): ins.r += ins.w
        if mn.startswith(('v_add_co', 'v_sub_co', 'v_addc_co', 'v_subb_co')):
            ins.w += regs_of(ops[1])
        if mn.startswith('v_cndmask') and len(ops) == 3: ins.r.append(('s', 'vcc'))
        if mn.startswith('v_writelane'): ins.r += ins.w
    elif mn.startswith(('buffer_', 'global_')):
        ins.kind = 'vmem'
        if re.search(r'\blds\b', rest) or 'load_lds' in mn:
            ins.r = allr(ops) + [('s', 'm0')]; ins.lds_dma = True
        elif 'store' in mn:
            ins.r = allr(ops); ins.wide = ('x4' in mn or 'x3' in mn)
        elif 'atomic' in mn:
            ins.r = allr(ops)
            if re.search(r'\bsc0\b', rest): ins.w = regs_of(ops[0])
        else:
            ins.w = regs_of(ops[0]); ins.r = allr(ops[1:])
            if 'd16' in mn: ins.r += ins.w
    elif mn.startswith('ds_'):
        ins.kind = 'lds'
        if mn.startswith(('ds_write', 'ds_add_f32', 'ds_add_u32', 'ds_max', 'ds_min', 'ds_or')) and 'rtn' not in mn:
            ins.r = allr(ops)
        else:
            ins.w = regs_of(ops[0]); ins.r = allr(ops[1:])
    elif mn.startswith('s_'):
        ins.kind = 'salu'
        if mn in ('s_waitcnt', 's_nop', 's_barrier', 's_endpgm', 's_sleep', 's_setprio') or mn.startswith(('s_branch', 's_cbranch')):
            ins.kind = 'ctl'
        elif mn.startswith('s_cmp') or mn.startswith('s_bitcmp'):
            ins.r = allr(ops)
        elif mn.startswith(('s_load', 's_memtime', 's_memrealtime')):
            ins.kind = 'smem'; ins.w = regs_of(ops[0]); ins.r = allr(ops[1:])
        else:
            ins.w = regs_of(ops[0]); ins.r = allr(ops[1:])
            if 'saveexec' in mn: ins.w.append(('s', 'exec'))
    else:
        raise ValueError('unknown instr ' + t)
    return ins


class Gen:
    def __init__(self):
        self.out = []
        self.reset_state()

    def reset_state(self):
        self.pos = 0
        self.vq = []
        self.lq = []
        self.lastw = {}
        self.srcc_rd = {}
        self.wide_rd = {}
        self.mfma_d = {}
        self.vm_issued = 0

    def vm_tag(self):
        return self.vm_issued - 1

    def wait_vm(self, tag, extra=''):
        n = self.vm_issued - 1 - tag
        assert n >= 0
        self._I(f's_waitcnt vmcnt({min(n, 63)})' + extra)

    def raw(self, text):
        self.out.append(text)

    def comment(self, text):
        self.out.append('    ; ' + text)

    def label(self, name, nop=True):
        self.out.append(name + ':')
        if nop:
            self.out.append('    s_nop 15'); self.pos += 16
            self.out.append('    s_nop 3'); self.pos += 4

    def forget_pending(self):
        self.vq = []; self.lq = []

    def forget_pending_vm(self):
        self.vq = []

    def _emit(self, text, states=1):
        self.out.append('    ' + text)
        self.pos += states

    def _wait(self, q, regs, maxn, name):
        idx = -1
        for i, d in enumerate(q):
            if d and any(r in d for r in regs): idx = i
        if idx >= 0:
            n = len(q) - 1 - idx
            n = min(n, maxn)
            self._emit(f's_waitcnt {name}({n})')
            del q[:len(q) - n]

    def I(self, text):
        for line in text.strip().split('\n'):
            line = line.split(';')[0].strip()
            if line: self._I(line)

    def _I(self, text):
        ins = parse(text)
        mn = ins.mn
        if mn == 's_waitcnt':
            m = re.search(r'vmcnt\((\d+)\)', text)
            if m:
                n = int(m.group(1))
                if len(self.vq) > n: del self.vq[:len(self.vq) - n]
            m = re.search(r'lgkmcnt\((\d+)\)', text)
            if m:
                n = int(m.group(1))
                if len(self.lq) > n: del self.lq[:len(self.lq) - n]
            self._emit(text); return
        if mn == 's_nop':
            n = int(text.split()[1]); self._emit(text, n + 1); return
        touched = list(ins.r) + list(ins.w) + list(ins.srcc)
        self._wait(self.vq, touched, 63, 'vmcnt')
        self._wait(self.lq, touched, 15, 'lgkmcnt')
        need = 0
        def req(ppos, ws):
            nonlocal need
            gap = self.pos - ppos - 1
            if gap < ws: need = max(need, ws - gap)
        isv = ins.kind in ('valu', 'trans')
        for r in ins.r + ins.srcc:
            lw = self.lastw.get(r)
            if not lw: continue
            p, k, ps = lw
            if k == 'dot':
                if not mn.startswith('v_dot'): req(p, 3)
            if k in ('valu', 'trans', 'dot'):
                if r[0] in 'va':
                    if ins.kind == 'mfma': req(p, 2)
                    if mn.startswith(('v_readfirstlane', 'v_readlane')): req(p, 1)
                    if mn.startswith('v_permlane'): req(p, 2)
                    if 'dpp' in text or 'row_' in text: req(p, 2)
                    if k == 'trans' and isv: req(p, 1)
                else:
                    if isv: req(p, 2)
                    if ins.kind == 'vmem': req(p, 5)
                    if ins.kind in ('salu', 'ctl', 'smem'): req(p, 1)
            elif k == 'mfma':
                if ins.kind == 'mfma':
                    if r in ins.srcc and r not in ins.r:
                        same = self.mfma_d.get(r) == tuple(ins.srcc)
                        if not (same and ps == ins.passes): req(p, {8: 10, 4: 6}[ps])
                    else:
                        req(p, {8: 12, 4: 8}[ps])
                else:
                    req(p, {8: 12, 4: 8}[ps])
            elif k == 'salu':
                if r == ('s', 'm0') and ins.lds_dma: req(p, 1)
        for r in ins.w:
            lw = self.lastw.get(r)
            if lw and lw[1] == 'mfma' and ins.kind != 'mfma':
                req(lw[0], {8: 12, 4: 8}[lw[2]])
            if lw and lw[1] == 'mfma' and ins.kind == 'mfma' and not (r in ins.srcc):
                req(lw[0], {8: 12, 4: 8}[lw[2]])
            sc = self.srcc_rd.get(r)
            if sc and ins.kind != 'mfma': req(sc[0], {8: 7, 4: 3}[sc[1]])
            wr = self.wide_rd.get(r)
            if wr is not None: req(wr, 2)
        while need > 0:
            n = min(need, 16)
            self._emit(f's_nop {n - 1}', n); need -= n
        p = self.pos
        self._emit(text)
        for r in ins.w:
            self.lastw[r] = (p, 'dot' if mn.startswith('v_dot') else ins.kind, ins.passes)
            if ins.kind == 'mfma': self.mfma_d[r] = tuple(ins.w)
        if ins.kind == 'mfma':
            for r in ins.srcc: self.srcc_rd[r] = (p, ins.passes)
        if ins.kind == 'vmem':
            if ins.wide:
                for r in regs_of(split_ops(text.split(None, 1)[1])[0 if mn.startswith('buffer') else 1]):
                    self.wide_rd[r] = p
            self.vq.append(set(ins.w))
            self.vm_issued += 1
        if ins.kind == 'lds':
            self.lq.append(set(ins.w))

    def skippable(self, lines):
        p = self.pos
        for l in lines: self._I(l)
        self.pos = p

    def text(self):
        return '\n'.join(self.out) + '\n'


def vr(base, n=1):
    return f'v{base}' if n == 1 else f'v[{base}:{base + n - 1}]'
def ar(base, n=1):
    return f'a{base}' if n == 1 else f'a[{base}:{base + n - 1}]'
def sr(base, n=1):
    return f's{base}' if n == 1 else f's[{base}:{base + n - 1}]'
```

```python
from asmgen import *
from gen_k2 import HF_OFF, WF_OFF, KVP_OFF, ZP_OFF, FLAG_OFF, WS_SIZE, STAMP_OFF, NKS, LOG2E, stamp_begin, stamp_end

K1_LDS = 163840
SLOT = 45056
M = 3 * SLOT
M_CS = M + 12288
M_Z0 = M
M_CNT = M + 1024
M_ZERO = M + 1088
M_STAT = M + 8192
M_BIAS = M + 3072
M_RST = M + 4096
M_KVL = M + 5120
M_ZL = M + 7168
M_VX = 0
M_KVX = 16384
M_ZX = M_VX
M_DUMMY = M + 1152

XF = 128
WFR = 96
RSQ, RS1 = 3072, 3584

SX, SQ, SP, SO, S1, SB1, S2, SD, SW = 4, 8, 12, 16, 20, 24, 28, 32, 36
sWAVE, sRB, sCG, sR4, sTYPE, sHT0, sONES, sLOG, sMASK, sRT = 40, 41, 42, 43, 44, 45, 46, 47, 48, 49
sXE, sXO, sXM, sWA, sWB, sWM, sPP, sPUB, sPM = 52, 53, 54, 55, 56, 57, 58, 59, 51

def gen_k1(g, stamp=False, dbg=0, xmap=0):
    I = g.I
    g.raw('.p2align 8')
    g.raw('k1_kernel:')
    g.reset_state()
    I('s_cmp_ge_u32 s2, 256')
    I('s_cbranch_scc1 k1_end')
    if stamp: stamp_begin(I)
    I(f's_load_dwordx4 s[64:67], s[0:1], 0')
    I(f's_load_dwordx2 s[{S1}:{S1+1}], s[0:1], 40')
    I('v_lshrrev_b32 v4, 6, v0')
    I('v_and_b32 v1, 63, v0')
    I(f'v_readfirstlane_b32 s{sWAVE}, v4')
    I('s_and_b32 s50, s2, 7')
    I('s_lshr_b32 s51, s2, 3')
    if xmap == 0:
        I('s_and_b32 s60, s50, 1'); I('s_lshl_b32 s60, s60, 3'); I('s_and_b32 s61, s51, 7')
        I(f's_add_u32 s{sRB}, s60, s61')
        I('s_lshr_b32 s60, s50, 1'); I('s_lshl_b32 s60, s60, 2'); I('s_lshr_b32 s61, s51, 3')
        I(f's_add_u32 s{sCG}, s60, s61')
    else:
        I(f's_and_b32 s{sRB}, s51, 15')
        I('s_lshl_b32 s60, s50, 1'); I('s_lshr_b32 s61, s51, 4')
        I(f's_add_u32 s{sCG}, s60, s61')
    I(f's_and_b32 s{sR4}, s{sWAVE}, 3')
    I(f's_lshr_b32 s{sTYPE}, s{sWAVE}, 2')
    I('v_lshrrev_b32 v8, 3, v1'); I('v_lshlrev_b32 v8, 10, v8')
    I('v_and_b32 v9, 7, v1'); I('v_lshrrev_b32 v6, 4, v1'); I('v_xor_b32 v9, v9, v6'); I('v_lshlrev_b32 v9, 4, v9')
    I('v_add_u32 v8, v8, v9'); I('v_xor_b32 v9, 64, v8')
    I('v_lshrrev_b32 v10, 2, v1'); I(f'v_mul_u32_u24 v10, {RSQ}, v10'); I('v_and_b32 v6, 3, v1'); I('v_lshlrev_b32 v6, 4, v6')
    I('v_add_u32 v10, v10, v6')
    I(f's_lshl_b32 s{sXE}, s{sRB}, 17'); I(f's_lshl_b32 s60, s{sWAVE}, 14'); I(f's_add_u32 s{sXE}, s{sXE}, s60')
    I(f's_add_u32 s{sXO}, s{sXE}, 8192')
    I(f's_lshl_b32 s{sXM}, s{sWAVE}, 11')
    I(f's_mul_i32 s{sWA}, s{sR4}, {16*RSQ}'); I(f's_lshl_b32 s60, s{sCG}, 6'); I(f's_add_u32 s{sWB}, s{sWA}, s60')
    I(f's_add_u32 s60, s{sTYPE}, 1'); I('s_lshl_b32 s60, s60, 10'); I(f's_add_u32 s{sWA}, s{sWB}, s60')
    I(f's_lshl_b32 s{sWM}, s{sR4}, 10')
    I(f's_lshl_b32 s{sPM}, s{sR4}, 11')
    I(f's_lshr_b32 s60, s{sCG}, 2'); I('s_mul_i32 s60, s60, 14'); I(f's_and_b32 s61, s{sCG}, 3'); I('s_lshl_b32 s61, s61, 2')
    I(f's_add_u32 s{sHT0}, s60, s61')
    I('v_lshrrev_b32 v11, 3, v1'); I(f'v_mul_u32_u24 v11, {RS1}, v11'); I('v_add_u32 v11, v11, v6')
    I('v_lshrrev_b32 v6, 2, v1'); I('v_lshrrev_b32 v7, 4, v1'); I('v_xor_b32 v6, v6, v7'); I('v_and_b32 v6, 1, v6')
    I('v_lshlrev_b32 v6, 6, v6'); I('v_add_u32 v11, v11, v6')
    I(f's_mul_i32 s{sPP}, s{sR4}, {16*RS1}'); I(f's_lshl_b32 s60, s{sHT0}, 6'); I(f's_add_u32 s{sPP}, s{sPP}, s60')
    I(f's_lshl_b32 s60, s{sTYPE}, 7'); I(f's_add_u32 s{sPP}, s{sPP}, s60')
    I('s_waitcnt lgkmcnt(0)')
    I(f's_mov_b32 s{S1+2}, {512*3584}'); I(f's_mov_b32 s{S1+3}, 0x20000')
    I(f's_mov_b32 s{SX}, s64'); I(f's_mov_b32 s{SX+1}, s65'); I(f's_mov_b32 s{SX+2}, 0x200000'); I(f's_mov_b32 s{SX+3}, 0x20000')
    I(f's_mov_b32 s{SQ}, s66'); I(f's_mov_b32 s{SQ+1}, s67'); I(f's_mov_b32 s{SQ+2}, {512*3072}'); I(f's_mov_b32 s{SQ+3}, 0x20000')
    for srd, off in ((SP, 16), (SO, 24), (SB1, 48), (S2, 56), (SD, 80), (SW, 88)):
        I(f's_load_dwordx2 s[{srd}:{srd+1}], s[0:1], {off}')
    I(f's_cmp_eq_u32 s{sTYPE}, 1')
    I('s_cbranch_scc1 k1_pathB')
    saved = (list(g.vq), list(g.lq), g.vm_issued)

    mk = [0]
    def mark(tag=0):
        if stamp and tag == ((dbg >> 8) & 0xff) and mk[0] < 8:
            I(f's_memtime s[{74+2*mk[0]}:{75+2*mk[0]}]'); mk[0] += 1
    def marks_out():
        if not stamp: return
        I('s_waitcnt lgkmcnt(0)')
        for i in range(8):
            I(f's_sub_u32 s{74+2*i}, s{74+2*i}, s92')
            I(f'v_mov_b32 v{16+i}, s{74+2*i}')
        I('s_lshl_b32 s98, s2, 3'); I(f's_add_u32 s98, s98, s{sWAVE}'); I('s_lshl_b32 s98, s98, 5')
        I('s_add_u32 s98, s98, 0x%x' % (STAMP_OFF + 0x20000))
        I('v_mov_b32 v24, s98')
        I(f's_mov_b32 s{SW+2}, 0x1000000')
        I(f'buffer_store_dwordx4 v[16:19], v24, s[{SW}:{SW+3}], 0 offen')
        I(f'buffer_store_dwordx4 v[20:23], v24, s[{SW}:{SW+3}], 0 offen offset:16')
        mk[0] = 0

    def dma_stage(j, path):
        sb = (j % 3) * SLOT
        G = []
        for e in range(2):
            G.append([f's_add_u32 m0, s{sXM}, {sb + e*1024}',
                      f'buffer_load_dwordx4 v{8+e}, s[{SX}:{SX+3}], s{sXE+e} offen lds',
                      f's_add_u32 s{sXE+e}, s{sXE+e}, 128'])
        G.append([f's_add_u32 m0, s{sWM}, {sb + 16384 + (0 if path == "A" else 4096)}',
                  f'buffer_load_dwordx4 v10, s[{SQ}:{SQ+3}], s{sWA} offen lds',
                  f's_add_u32 s{sWA}, s{sWA}, {64*RSQ}'])
        if path == 'B':
            G.append([f's_add_u32 m0, s{sWM}, {sb + 16384 + 8192}',
                      f'buffer_load_dwordx4 v10, s[{SQ}:{SQ+3}], s{sWB} offen lds',
                      f's_add_u32 s{sWB}, s{sWB}, {64*RSQ}'])
        pb = sb + 28672 + (0 if path == 'A' else 8192)
        for i in range(2):
            G.append([f's_add_u32 m0, s{sPM}, {pb + i*1024}',
                      f'buffer_load_dwordx4 v11, s[{S1}:{S1+3}], s{sPP} offen lds',
                      f's_add_u32 s{sPP}, s{sPP}, {8*RS1 if i == 0 else 56*RS1}'])
        G[-1] = G[-1] + [f'__tag__{j}']
        return G

    def late_setup():
        I('v_and_b32 v2, 31, v1')
        I('v_lshrrev_b32 v3, 5, v1')
        I('v_lshlrev_b32 v4, 4, v1')
        I(f's_lshl_b32 s{sRT}, s{sRB}, 2'); I(f's_add_u32 s{sRT}, s{sRT}, s{sR4}')
        I(f's_mov_b32 s{sONES}, 0x3f803f80')
        I(f's_mov_b32 s{sLOG}, 0x%x' % LOG2E)
        I(f's_mov_b32 s{sMASK}, 0xffff0000')
        I('s_waitcnt lgkmcnt(0)')
        for srd, size in ((SP, 16384), (SO, 512 * 1024), (SB1, 3584), (S2, 1792 * 1024), (SD, 256), (SW, WS_SIZE)):
            I(f's_mov_b32 s{srd+2}, {size}'); I(f's_mov_b32 s{srd+3}, 0x20000')

    def side_job(idx_expr_s, vt, vh, va, sdst):
        I('s_and_b32 s62, s2, 15'); I('s_mul_i32 s62, s62, 9'); I(f's_add_u32 s62, s62, {idx_expr_s}')
        I('s_lshr_b32 s63, s2, 4')
        I(f'v_lshrrev_b32 v{va}, 2, v2'); I(f'v_and_b32 v{va}, 1, v{va}'); I(f'v_lshlrev_b32 v{va}, 4, v{va}')
        I(f'v_lshrrev_b32 v{va+1}, 3, v2'); I(f'v_lshlrev_b32 v{va+1}, 2, v{va+1}'); I(f'v_add_u32 v{va}, v{va}, v{va+1}')
        I(f'v_and_b32 v{va+1}, 3, v2'); I(f'v_add_u32 v{va}, v{va}, v{va+1}')
        I('s_lshl_b32 s64, s63, 5'); I(f'v_add_u32 v{va}, s64, v{va}'); I(f'v_lshlrev_b32 v{va}, 1, v{va}')
        I('s_lshl_b32 s64, s62, 4')
        I('s_sub_u32 s65, s62, 112'); I('s_lshr_b32 s66, s65, 1'); I('s_lshl_b32 s66, s66, 5'); I('s_and_b32 s65, s65, 1')
        I('s_lshl_b32 s65, s65, 3'); I('s_add_u32 s65, s65, s66')
        I('s_cmp_lt_u32 s62, 112')
        I('s_cselect_b32 s64, s64, s65')
        I('s_cselect_b32 s65, 12, 14')
        I('s_cselect_b32 s66, 2, 1')
        I(f's_cselect_b32 s68, s{S2}, s{SO}'); I(f's_cselect_b32 s69, s{S2+1}, s{SO+1}')
        I(f's_cselect_b32 s70, s{S2+2}, s{SO+2}'); I('s_mov_b32 s71, 0x20000')
        I('s_lshl_b32 s66, s66, 12')
        I('s_lshl_b32 s64, s64, 10')
        I(f'v_lshlrev_b32 v{va+1}, s65, v3'); I(f'v_add_u32 v{va}, v{va}, v{va+1}'); I(f'v_add_u32 v{va}, s64, v{va}')
        for q in range(4):
            so = '0' if q < 2 else 's66'
            I(f'buffer_load_ushort v{vt+q}, v{va}, s[68:71], {so} offen offset:{(2*(q&1))*1024}')
            I(f'buffer_load_ushort v{vh+q}, v{va}, s[68:71], {so} offen offset:{(2*(q&1)+1)*1024}')
        I(f's_mul_i32 s{sdst}, s63, {NKS}'); I(f's_add_u32 s{sdst}, s{sdst}, s62'); I(f's_lshl_b32 s{sdst}, s{sdst}, 10')
        I(f's_add_u32 s{sdst}, s{sdst}, {WF_OFF}')
    def side_store(vt, vh, sdst):
        for q in range(4): I(f'v_lshl_or_b32 v{vt+q}, v{vh+q}, 16, v{vt+q}')
        I(f'buffer_store_dwordx4 v[{vt}:{vt+3}], v4, s[{SW}:{SW+3}], s{sdst} offen')

    def wphi_load():
        I('v_lshrrev_b32 v13, 2, v2'); I('v_and_b32 v13, 1, v13')
        I(f's_lshl_b32 s60, s{sCG}, 10')
        I('v_lshlrev_b32 v14, 9, v13'); I('v_add_u32 v14, s60, v14')
        I('v_lshlrev_b32 v15, 7, v3'); I('v_add_u32 v14, v14, v15')
        I('v_lshrrev_b32 v15, 3, v2'); I('v_lshlrev_b32 v15, 3, v15'); I('v_add_u32 v14, v14, v15')
        I('v_and_b32 v15, 3, v2'); I('v_lshlrev_b32 v15, 1, v15'); I('v_add_u32 v14, v14, v15')
        for q in range(4):
            j = 2 * q
            I(f'buffer_load_ushort v{56+q}, v14, s[{SP}:{SP+3}], 0 offen offset:{(j&3)*32+(j>>2)*256}')
            I(f'buffer_load_ushort v{60+q}, v14, s[{SP}:{SP+3}], 0 offen offset:{((j+1)&3)*32+(j>>2)*256}')
    def wphi_build():
        for q in range(4): I(f'v_lshl_or_b32 v{60+q}, v{60+q}, 16, v{56+q}')
        I('v_cmp_eq_u32 vcc, 0, v13')
        for q in range(4): I(f'v_cndmask_b32 v{56+q}, 0, v{60+q}, vcc')
        for q in range(4): I(f'v_cndmask_b32 v{60+q}, v{60+q}, 0, vcc')

    def tr_addr(dst, pair):
        I(f'v_lshlrev_b32 v{dst}, {10 if pair else 9}, v3')
        I('v_and_b32 v14, 15, v1'); I('v_lshrrev_b32 v15, 2, v14'); I(f'v_lshlrev_b32 v15, {7 if pair else 6}, v15'); I(f'v_add_u32 v{dst}, v{dst}, v15')
        I('v_and_b32 v15, 3, v1'); I('v_lshlrev_b32 v15, 3, v15'); I(f'v_add_u32 v{dst}, v{dst}, v15')
        I('v_and_b32 v15, 16, v1'); I('v_lshlrev_b32 v15, 1, v15'); I(f'v_add_u32 v{dst}, v{dst}, v15')
        if pair:
            I('v_and_b32 v15, 8, v1'); I('v_lshlrev_b32 v15, 3, v15'); I(f'v_add_u32 v{dst}, v{dst}, v15')

    def bmask(dst):
        I('v_and_b32 v14, 15, v1'); I('v_lshrrev_b32 v15, 4, v1'); I('v_and_b32 v15, 1, v15')
        I('v_cmp_eq_u32 vcc, v14, v15')
        I(f'v_mov_b32 v14, s{sONES}')
        for q in range(4): I(f'v_cndmask_b32 v{dst+q}, 0, v14, vcc')

    def sum16_addr(dst, base):
        I('v_and_b32 v14, 15, v1'); I(f'v_lshlrev_b32 v{dst}, 6, v14'); I('v_lshrrev_b32 v15, 4, v1'); I('v_lshlrev_b32 v15, 4, v15')
        I(f'v_add_u32 v{dst}, v{dst}, v15'); I(f'v_add_u32 v{dst}, {base}, v{dst}')
        I('v_cmp_gt_u32 vcc, 2, v14')

    def cs_add(regs, slot):
        sum16_addr(12, M_CS + slot * 512)
        I(f's_lshl_b32 s60, s{sR4}, 7'); I('v_add_u32 v12, s60, v12')
        I('s_and_saveexec_b64 s[62:63], vcc')
        for i, rb_ in enumerate(regs):
            I(f'ds_write_b128 v12, {vr(rb_,4)} offset:{i*512}')
        I('s_mov_b64 exec, s[62:63]')

    def read_cs(slot, dst, tmp):
        I('v_lshlrev_b32 v14, 4, v3'); I(f'v_add_u32 v14, {M_CS + slot*512}, v14')
        for w in range(4):
            for q in range(4):
                I(f'ds_read_b128 {vr((dst if w == 0 else tmp+16*(w-1))+4*q,4)}, v14 offset:{w*128+q*32}')
        for r in range(0, 16, 2):
            I(f'v_pk_add_f32 {vr(dst+r,2)}, {vr(dst+r,2)}, {vr(tmp+r,2)}')
            I(f'v_pk_add_f32 {vr(tmp+16+r,2)}, {vr(tmp+16+r,2)}, {vr(tmp+32+r,2)}')
            I(f'v_pk_add_f32 {vr(dst+r,2)}, {vr(dst+r,2)}, {vr(tmp+16+r,2)}')

    def phase0(path, hook):
        A = path == 'A'
        n64 = 1 if A else 2
        nt = n64 + 2
        XR, WR = 176, 192
        CSF = 240 if A else 128
        CSA = 160
        I(f's_lshl_b32 s60, s{sR4}, 12')
        I('v_lshlrev_b32 v6, 7, v2'); I('v_add_u32 v6, s60, v6')
        I('v_lshrrev_b32 v7, 1, v2'); I('v_and_b32 v7, 7, v7')
        for j in range(4):
            I(f'v_add_u32 v{16+j}, {2*j}, v3'); I(f'v_xor_b32 v{16+j}, v{16+j}, v7'); I(f'v_lshlrev_b32 v{16+j}, 4, v{16+j}')
            I(f'v_add_u32 v{16+j}, v{16+j}, v6')
        tr_addr(20, False)
        I(f'v_add_u32 v20, {16384 + (0 if A else 4096)}, v20')
        I(f's_lshl_b32 s60, s{sR4}, 10'); I('v_add_u32 v21, s60, v20')
        tr_addr(22, True)
        I(f'v_add_u32 v22, {28672 + (0 if A else 8192)}, v22'); I('v_xor_b32 v23, 64, v22')
        I(f's_lshl_b32 s60, s{sR4}, 11'); I('v_add_u32 v24, s60, v22'); I('v_add_u32 v25, s60, v23')
        for k in (1, 2):
            for i in range(10): I(f'v_add_u32 v{16+10*k+i}, {k*SLOT}, v{16+i}')
        bmask(46)
        for r in (6, 7, 54, 55): I(f'v_mov_b32 v{r}, 0')
        for r in range(CSA, CSA + 4 * nt): I(f'v_mov_b32 v{r}, 0')
        for s in range(8):
            g.wait_vm(tags[s], ' lgkmcnt(0)')
            I('s_barrier')
            if s == 0: mark()
            mark(2)
            ab = 16 + 10 * (s % 3)
            G = []
            if s + 2 < 8: G = dma_stage(s + 2, path)
            if dbg & 16: G = [[l for l in grp if not l.startswith('buffer_load')] for grp in G]
            G += hook(s)
            gi = [0]
            def dma(n=1):
                for _ in range(n):
                    if gi[0] < len(G):
                        for l in G[gi[0]]: I(l)
                        gi[0] += 1
            def wf(kk, e): return WR + (kk * nt + e) * 4
            def rd_list(kk):
                if dbg & 8: return []
                L = [f'ds_read_b128 {vr(XR+4*kk,4)}, v{ab+kk}']
                for e in range(n64):
                    L.append(f'ds_read_b64_tr_b16 {vr(wf(kk,e),2)}, v{ab+4} offset:{e*4096+kk*1024}')
                    L.append(f'ds_read_b64_tr_b16 {vr(wf(kk,e)+2,2)}, v{ab+4} offset:{e*4096+kk*1024+256}')
                for e in range(2):
                    L.append(f'ds_read_b64_tr_b16 {vr(wf(kk,n64+e),2)}, v{ab+6+e} offset:{kk*2048}')
                    L.append(f'ds_read_b64_tr_b16 {vr(wf(kk,n64+e)+2,2)}, v{ab+6+e} offset:{kk*2048+512}')
                return L
            def mf_list(t):
                if dbg & 4 or t < 0: return []
                kk = t % 4
                x = vr(XR + 4 * kk, 4)
                L = []
                for e in range(nt):
                    acc = 64 + 16 * e
                    c = '0' if t == 0 else vr(acc, 16)
                    if (not A) and e == 0: L.append(f'v_mfma_f32_32x32x16_bf16 {vr(acc,16)}, {x}, {vr(wf(kk,e),4)}, {c}')
                    else: L.append(f'v_mfma_f32_32x32x16_bf16 {vr(acc,16)}, {vr(wf(kk,e),4)}, {x}, {c}')
                return L
            def st_list(t):
                kk = t % 4
                if t < 0 or (kk & 1) != (0 if A else 1) or (dbg & 2): return []
                L = []
                for q in range(4):
                    xr = XR + 4 * kk + q
                    L += [f'v_lshlrev_b32 v{50+(q&1)*2}, 16, v{xr}', f'v_and_b32 v{51+(q&1)*2}, s{sMASK}, v{xr}',
                          f'v_add_f32 v6, v6, v{50+(q&1)*2}', f'v_fmac_f32 v54, v{50+(q&1)*2}, v{50+(q&1)*2}',
                          f'v_add_f32 v7, v7, v{51+(q&1)*2}', f'v_fmac_f32 v55, v{51+(q&1)*2}, v{51+(q&1)*2}']
                return L
            def csmf(t):
                if dbg & 4 or t < 0: return
                kk = t % 4
                lab = f'k1_cs{path}{t}'
                I(f's_cmp_lg_u32 s{sR4}, {kk}')
                I(f's_cbranch_scc1 {lab}')
                g.skippable([f'v_mfma_f32_16x16x32_bf16 {vr(CSA+4*e,4)}, {vr(wf(kk,e),4)}, v[46:49], {vr(CSA+4*e,4)}' for e in range(nt)])
                g.raw(lab + ':')
            def step(tm, rk):
                Mx = mf_list(tm); R = rd_list(rk) if rk is not None else []; S = st_list(tm)
                n = max(len(Mx), 1)
                for i in range(n):
                    if i < len(Mx): I(Mx[i])
                    for l in R[i * len(R) // n:(i + 1) * len(R) // n]: I(l)
                    for l in S[i * len(S) // n:(i + 1) * len(S) // n]: I(l)
                csmf(tm)
            for j in range(4):
                dma(1 if j < 2 else 2)
                step(4 * s - 2 + j, j)
            dma(9)
            if s == 7:
                step(30, None); step(31, None)
        I('v_add_f32 v6, v6, v7'); I('v_add_f32 v7, v54, v55')
        I(f's_lshl_b32 s60, s{sR4}, 9'); I(f's_add_u32 s60, s60, {M_STAT + (0 if A else 2048)}')
        I('v_lshlrev_b32 v12, 4, v2'); I('v_lshlrev_b32 v13, 3, v3'); I('v_add_u32 v12, v12, v13'); I('v_add_u32 v12, s60, v12')
        I('ds_write_b64 v12, v[6:7]')

    cnt_id = [0]
    def signal(addr_off):
        I('s_waitcnt lgkmcnt(0)')
        I(f'v_mov_b32 v14, {addr_off}'); I('v_mov_b32 v15, 1')
        I('s_mov_b64 exec, 1')
        I('ds_add_u32 v14, v15')
        I('s_mov_b64 exec, -1')
    def spin(addr_v, n):
        cnt_id[0] += 1
        L = f'k1_sp{cnt_id[0]}'
        I('s_mov_b32 s61, 0')
        g.label(L, nop=False)
        I(f'ds_read_b32 v15, v{addr_v}')
        I('s_waitcnt lgkmcnt(0)')
        I('v_readfirstlane_b32 s60, v15')
        I('s_add_u32 s61, s61, 1')
        I(f's_cmp_ge_u32 s60, {n}')
        I(f's_cbranch_scc1 {L}d')
        I('s_cmp_lt_u32 s61, 0x400000')
        I(f's_cbranch_scc1 {L}')
        g.label(L + 'd', nop=False)
    def sync4(cnt_off):
        signal(M_CNT + cnt_off)
        spin(14, 4)

    def bfr(r, t):
        I(f'v_cvt_pk_bf16_f32 v{t}, v{r}, v{r}')
        I(f'v_lshlrev_b32 v{r}, 16, v{t}')

    def stats_final():
        I(f's_lshl_b32 s60, s{sR4}, 9')
        I('v_lshlrev_b32 v16, 4, v2'); I('v_add_u32 v16, s60, v16'); I(f'v_add_u32 v16, {M_STAT}, v16')
        I('ds_read_b128 v[20:23], v16')
        I('ds_read_b128 v[24:27], v16 offset:2048')
        I('v_add_f32 v18, v20, v22'); I('v_add_f32 v19, v24, v26'); I('v_add_f32 v18, v18, v19')
        I('v_add_f32 v20, v21, v23'); I('v_add_f32 v19, v25, v27'); I('v_add_f32 v20, v20, v19')
        I('v_mul_f32 v18, 0x3b000000, v18')
        I('v_mul_f32 v20, 0x3b000000, v20')
        I('v_fma_f32 v20, -v18, v18, v20')
        I('v_max_f32 v20, 0, v20')
        bfr(18, 22); bfr(20, 23)
        I('v_add_f32 v20, 0x3727c5ac, v20')
        bfr(20, 23)
        I('v_sqrt_f32 v20, v20')
        bfr(20, 23)
        I('v_rcp_f32 v6, v20')
        I('v_mul_f32 v7, v18, v6')

    def read16(base, dst):
        I('v_lshlrev_b32 v14, 4, v3'); I(f'v_add_u32 v14, {base}, v14')
        for q in range(4):
            I(f'ds_read_b128 {vr(dst+4*q,4)}, v14 offset:{q*32}')

    def features(acc, D, slot, PH):
        read_cs(slot, 16, 192)
        for r in range(16):
            I(f'v_mul_f32 v{16+r}, v7, v{16+r}')
            I(f'v_fma_f32 v{acc+r}, v{acc+r}, v6, -v{16+r}')
        for i in range(8):
            I(f'v_cvt_pk_bf16_f32 v{32+i}, v{acc+2*i}, v{acc+2*i+1}')
        I(f'v_mfma_f32_32x32x16_bf16 {vr(D,16)}, v[56:59], v[32:35], 0')
        I(f'v_mfma_f32_32x32x16_bf16 {vr(D,16)}, v[60:63], v[36:39], {vr(D,16)}')
        I(f'v_max3_f32 v40, v{D}, v{D+1}, v{D+2}'); I(f'v_min3_f32 v41, v{D}, v{D+1}, v{D+2}')
        for r in range(3, 15, 2):
            I(f'v_max3_f32 v40, v40, v{D+r}, v{D+r+1}'); I(f'v_min3_f32 v41, v41, v{D+r}, v{D+r+1}')
        I(f'v_max_f32 v40, v40, v{D+15}'); I(f'v_min_f32 v41, v41, v{D+15}')
        I(f'v_mul_f32 v40, s{sLOG}, v40'); I(f'v_mul_f32 v41, s{sLOG}, v41')
        EP, EN = 16, acc
        for r in range(16):
            I(f'v_fma_f32 v{EP+r}, v{D+r}, s{sLOG}, -v40')
            I(f'v_fma_f32 v{EN+r}, -v{D+r}, s{sLOG}, v41')
        for r in range(16):
            I(f'v_exp_f32 v{EP+r}, v{EP+r}')
            I(f'v_exp_f32 v{EN+r}, v{EN+r}')
        for base, o in ((EP, 42), (EN, 44)):
            I(f'v_add_f32 v{o}, v{base}, v{base+1}'); I(f'v_add_f32 v{o+1}, v{base+2}, v{base+3}')
            for r in range(4, 16, 2):
                I(f'v_add_f32 v{o}, v{o}, v{base+r}'); I(f'v_add_f32 v{o+1}, v{o+1}, v{base+r+1}')
            I(f'v_add_f32 v{o}, v{o}, v{o+1}')
        I('v_rcp_f32 v42, v42'); I('v_rcp_f32 v44, v44')
        for r in range(16):
            I(f'v_mul_f32 v{EP+r}, v{EP+r}, v42')
            I(f'v_mul_f32 v{EN+r}, v{EN+r}, v44')
        for i in range(8):
            I(f'v_cvt_pk_bf16_f32 v{PH+i}, v{EP+2*i}, v{EP+2*i+1}')
        for i in range(8):
            I(f'v_cvt_pk_bf16_f32 v{PH+8+i}, v{EN+2*i}, v{EN+2*i+1}')

    def h_epi(acc, i, T0=16, T1=32, O=208):
        read_cs(4 + i, T0, 128)
        read16(M_BIAS + i * 128, T1)
        for r in range(16):
            I(f'v_fma_f32 v{T0+r}, v7, v{T0+r}, -v{T1+r}')
            I(f'v_fma_f32 v{acc+r}, v{acc+r}, v6, -v{T0+r}')
            I(f'v_max_f32 v{acc+r}, 0, v{acc+r}')
            I(f'v_mul_f32 v{acc+r}, v{acc+r}, v{acc+r}')
        for k in range(8):
            I(f'v_cvt_pk_bf16_f32 v{O+k}, v{acc+2*k}, v{acc+2*k+1}')
        I(f's_mul_i32 s60, s{sRT}, {NKS}'); I(f's_lshl_b32 s61, s{sHT0}, 1'); I('s_add_u32 s60, s60, s61')
        I(f's_add_u32 s60, s60, {2*i}'); I('s_lshl_b32 s60, s60, 10')
        I(f'buffer_store_dwordx4 {vr(O,4)}, v4, s[{SW}:{SW+3}], s60 offen')
        I(f'buffer_store_dwordx4 {vr(O+4,4)}, v4, s[{SW}:{SW+3}], s60 offen offset:1024')

    tags = {}
    realI = g.I
    def I(text):
        if text.startswith('__tag__'):
            tags[int(text[7:])] = g.vm_tag(); return
        if text == '__side__':
            side_store(128, 132, 73); side_store(136, 140, 99); side_store(144, 148, 72); wphi_build()
            realI(f's_cmp_lg_u32 s{sR4}, 0')
            realI('s_cbranch_scc1 k1_nocount')
            sv2 = (list(g.vq), list(g.lq), g.vm_issued)
            realI(f's_lshl_b32 s61, s{sCG}, 4'); realI('v_mov_b32 v14, s61'); realI('v_mov_b32 v15, 1')
            realI('s_mov_b64 exec, 1')
            realI(f'buffer_atomic_add v15, v14, s[{SD}:{SD+3}], 0 offen sc1')
            realI('s_mov_b64 exec, -1')
            g.label('k1_nocount', nop=False)
            g.vq, g.lq, g.vm_issued = list(sv2[0]), list(sv2[1]), sv2[2]
            return
        if text == '__sideB__':
            wphi_build(); return
        realI(text)
    for j in range(2):
        for grp in dma_stage(j, 'A'):
            for l in grp: I(l)
    late_setup()
    for q in range(4): I(f'v_mov_b32 v{16+q}, 0')
    I(f'v_add_u32 v14, {M_Z0}, v4')
    I('ds_write_b128 v14, v[16:19] offset:1024')
    I(f's_cmp_lg_u32 s{sR4}, 0')
    I('s_cbranch_scc1 k1_noreset')
    svr = (list(g.vq), list(g.lq), g.vm_issued)
    I(f's_lshl_b32 s60, s{sCG}, 7'); I(f's_lshl_b32 s61, s{sRB}, 2'); I('s_add_u32 s60, s60, s61'); I(f's_add_u32 s60, s60, {FLAG_OFF}')
    I('v_mov_b32 v14, s60'); I('v_mov_b32 v15, 0')
    I('s_mov_b64 exec, 1')
    I(f'buffer_store_dword v15, v14, s[{SW}:{SW+3}], 0 offen sc1')
    I('s_mov_b64 exec, -1')
    g.label('k1_noreset', nop=False)
    g.vq, g.lq, g.vm_issued = list(svr[0]), list(svr[1]), svr[2]
    wphi_load()
    I(f's_lshl_b32 s72, s{sR4}, 1')
    side_job('s72', 128, 132, 152, 73)
    I('s_add_u32 s72, s72, 1')
    side_job('s72', 136, 140, 152, 99)
    side_job('8', 144, 148, 152, 72)
    def hookA(s):
        return [['__side__']] if s == 3 else []
    phase0('A', hookA)
    cs_add([160], 0)
    cs_add([164, 168], 4)
    I('s_waitcnt lgkmcnt(0)')
    I('s_barrier')
    mark(); mark(1)
    stats_final()
    features(64, 112, 0, 32)
    mark(1)
    I('v_and_b32 v16, 15, v2'); I('v_lshrrev_b32 v17, 4, v2'); I('v_xor_b32 v17, v17, v3'); I('v_lshlrev_b32 v17, 6, v17')
    I('v_add_u32 v16, v16, v17')
    I('v_mov_b32 v18, 0x3f80'); I('v_mov_b32 v19, 0x3f800000')
    for mq in range(8):
        I(f'v_cmp_eq_u32 vcc, {2*mq}, v16')
        I(f'v_cndmask_b32 v{48+mq}, 0, v18, vcc')
        I(f'v_cmp_eq_u32 vcc, {2*mq+1}, v16')
        I(f'v_cndmask_b32 v{48+mq}, v{48+mq}, v19, vcc')
    DT = (112, 176)
    for tl in range(2):
        D = DT[tl]
        I(f'v_mfma_f32_32x32x16_bf16 {vr(D,16)}, {vr(32+8*tl,4)}, v[48:51], 0')
        I(f'v_mfma_f32_32x32x16_bf16 {vr(D,16)}, {vr(36+8*tl,4)}, v[52:55], {vr(D,16)}')
    I(f's_lshl_b32 s60, s{sR4}, 2'); I(f's_add_u32 s60, s60, {M_CNT+16}'); I('v_mov_b32 v14, s60')
    spin(14, 1)
    I(f's_lshl_b32 s60, s{sR4}, 11'); I(f's_add_u32 s60, s60, {M_VX}'); I('v_add_u32 v12, s60, v4')
    I('ds_read_b128 v[48:51], v12'); I('ds_read_b128 v[52:55], v12 offset:1024')
    for tl in range(2):
        D = DT[tl]
        I(f'v_add_f32 v{8+tl}, v{D}, v{D+1}'); I(f'v_add_f32 v{10+tl}, v{D+2}, v{D+3}')
        for r in range(4, 16, 2):
            I(f'v_add_f32 v{8+tl}, v{8+tl}, v{D+r}'); I(f'v_add_f32 v{10+tl}, v{10+tl}, v{D+r+1}')
        I(f'v_add_f32 v{8+tl}, v{8+tl}, v{10+tl}')
        for i in range(8):
            I(f'v_cvt_pk_bf16_f32 v{16+8*tl+i}, v{D+2*i}, v{D+2*i+1}')
    for tl, T in ((0, 32), (1, 192)):
        I(f'v_mfma_f32_32x32x16_bf16 {vr(T,16)}, {vr(16+8*tl,4)}, v[48:51], 0')
        I(f'v_mfma_f32_32x32x16_bf16 {vr(T,16)}, {vr(20+8*tl,4)}, v[52:55], {vr(T,16)}')
    I('v_and_b32 v10, 16, v1'); I('v_cmp_ne_u32 vcc, 0, v10')
    for tl, T in ((0, 32), (1, 192)):
        for j in range(8):
            I(f'v_cndmask_b32 v{64+8*tl+j}, v{T+j}, v{T+8+j}, vcc')
    I(f's_lshl_b32 s60, s{sR4}, 12'); I(f's_add_u32 s60, s60, {M_KVX}')
    I('v_add_u32 v14, s60, v4')
    for q in range(4):
        I(f'ds_write_b128 v14, {vr(64+4*q,4)} offset:{q*1024}')
    I(f's_lshl_b32 s60, s{sR4}, 11'); I(f's_add_u32 s60, s60, {M_ZX}')
    I('v_lshlrev_b32 v11, 3, v1'); I('v_add_u32 v14, s60, v11')
    I('ds_write_b64 v14, v[8:9]')
    I('s_waitcnt lgkmcnt(0)')
    I(f'v_mov_b32 v14, {M_CNT}'); I('v_mov_b32 v10, 1')
    I('s_mov_b64 exec, 1')
    I('ds_add_rtn_u32 v10, v14, v10')
    I('s_waitcnt lgkmcnt(0)')
    I('s_mov_b64 exec, -1')
    I(f'v_readfirstlane_b32 s{sPUB}, v10')
    I(f's_cmp_lg_u32 s{sPUB}, 3')
    I('s_cbranch_scc1 k1_nopub')
    sv = (list(g.vq), list(g.lq), g.vm_issued)
    I(f'v_add_u32 v14, {M_KVX}, v4')
    PB = (16, 32, 64, 192)
    for w in range(4):
        for q in range(4):
            I(f'ds_read_b128 {vr(PB[w]+4*q,4)}, v14 offset:{w*4096+q*1024}')
    I(f'v_add_u32 v14, {M_ZX}, v11')
    for w in range(4):
        I(f'ds_read_b64 {vr(48+2*w,2)}, v14 offset:{w*2048}')
    for r in range(16):
        I(f'v_add_f32 v{16+r}, v{16+r}, v{32+r}')
        I(f'v_add_f32 v{192+r}, v{192+r}, v{64+r}')
        I(f'v_add_f32 v{16+r}, v{16+r}, v{192+r}')
    for e in range(2):
        I(f'v_add_f32 v{48+e}, v{48+e}, v{50+e}'); I(f'v_add_f32 v{52+e}, v{52+e}, v{54+e}'); I(f'v_add_f32 v{48+e}, v{48+e}, v{52+e}')
    I(f's_lshl_b32 s60, s{sCG}, 4'); I(f's_add_u32 s60, s60, s{sRB}')
    I('s_lshl_b32 s61, s60, 12'); I(f's_add_u32 s61, s61, {KVP_OFF}')
    for q in range(4):
        I(f'buffer_store_dwordx4 {vr(16+4*q,4)}, v4, s[{SW}:{SW+3}], s61 offen offset:{q*1024} sc1')
    I('v_permlane32_swap_b32 v48, v49')
    I('v_add_f32 v48, v48, v49')
    I('s_lshl_b32 s61, s60, 8'); I(f's_add_u32 s61, s61, {ZP_OFF}')
    I('v_lshlrev_b32 v14, 2, v1')
    I(f'buffer_store_dword v48, v14, s[{SW}:{SW+3}], s61 offen sc1')
    I('s_waitcnt vmcnt(0)')
    I(f's_lshl_b32 s60, s{sCG}, 7'); I(f's_lshl_b32 s61, s{sRB}, 2'); I('s_add_u32 s60, s60, s61'); I(f's_add_u32 s60, s60, {FLAG_OFF}')
    I('v_mov_b32 v14, s60'); I('v_mov_b32 v15, 1')
    I('s_mov_b64 exec, 1')
    I(f'buffer_store_dword v15, v14, s[{SW}:{SW+3}], 0 offen sc1')
    I('s_mov_b64 exec, -1')
    g.label('k1_nopub')
    g.vq, g.lq, g.vm_issued = list(sv[0]), list(sv[1]), sv[2]
    mark(1)
    h_epi(80, 0)
    h_epi(96, 1, O=216)
    mark(1)
    marks_out()
    if stamp: stamp_end(I, sWAVE, SW, STAMP_OFF)
    I('s_endpgm')

    g.label('k1_pathB')
    g.vq, g.lq, g.vm_issued = list(saved[0]), list(saved[1]), saved[2]
    tags.clear()
    for j in range(2):
        for grp in dma_stage(j, 'B'):
            for l in grp: I(l)
    late_setup()
    wphi_load()
    I('v_lshlrev_b32 v16, 2, v1'); I(f's_lshl_b32 s60, s{sHT0}, 6')
    I(f'buffer_load_dword v144, v16, s[{SB1}:{SB1+3}], s60 offen')
    def hookB(s):
        if s == 3:
            return [['__sideB__', 'v_lshlrev_b32 v146, 16, v144', f'v_and_b32 v147, s{sMASK}, v144',
                     'v_lshlrev_b32 v145, 3, v1', f'v_add_u32 v145, {M_BIAS}, v145', 'ds_write_b64 v145, v[146:147]']]
        return []
    phase0('B', hookB)
    cs_add([160, 164], 1)
    cs_add([168, 172], 6)
    I('s_waitcnt lgkmcnt(0)')
    I('s_barrier')
    mark(); mark(1)
    stats_final()
    I(f's_lshl_b32 s60, s{sR4}, 8'); I(f's_add_u32 s60, s60, {M_RST}')
    I('v_lshlrev_b32 v16, 2, v2'); I('v_add_u32 v16, s60, v16')
    I('ds_write_b32 v16, v6'); I('ds_write_b32 v16, v7 offset:128')
    I('v_lshlrev_b32 v14, 4, v3'); I('v_add_u32 v14, s60, v14')
    for q in range(4):
        I(f'ds_read_b128 {vr(16+4*q,4)}, v14 offset:{128+q*32}')
    I('v_lshlrev_b32 v15, 2, v2'); I(f'v_add_u32 v15, {M_CS+512}, v15')
    for w in range(4): I(f'ds_read_b32 v{8+w}, v15 offset:{w*128}')
    I('v_add_f32 v8, v8, v9'); I('v_add_f32 v10, v10, v11'); I('v_add_f32 v10, v10, v8')
    for q in range(4):
        I(f'ds_read_b128 {vr(32+4*q,4)}, v14 offset:{q*32}')
    for r in range(16):
        I(f'v_mul_f32 v{16+r}, v{16+r}, v10')
        I(f'v_fma_f32 v{64+r}, v{64+r}, v{32+r}, -v{16+r}')
    for i in range(8):
        I(f'v_cvt_pk_bf16_f32 v{48+i}, v{64+2*i}, v{64+2*i+1}')
    I(f's_lshl_b32 s60, s{sR4}, 11'); I(f's_add_u32 s60, s60, {M_VX}'); I('v_add_u32 v12, s60, v4')
    I('ds_write_b128 v12, v[48:51]'); I('ds_write_b128 v12, v[52:55] offset:1024')
    I('s_waitcnt lgkmcnt(0)')
    I(f's_lshl_b32 s60, s{sR4}, 2'); I(f's_add_u32 s60, s60, {M_CNT+16}'); I('v_mov_b32 v14, s60'); I('v_mov_b32 v15, 1')
    I('ds_write_b32 v14, v15')
    mark(1)
    features(80, 64, 2, 48)
    mark(1)
    I(f's_and_b32 s60, s{sCG}, 3'); I('s_cmp_eq_u32 s60, 3'); I('s_cbranch_scc1 k1_b_nopair')
    sv = (list(g.vq), list(g.lq), g.vm_issued)
    h_epi(96, 2)
    h_epi(112, 3, O=216)
    g.label('k1_b_nopair')
    g.vq, g.lq, g.vm_issued = list(sv[0]), list(sv[1]), sv[2]
    mark(1)
    I(f's_cmp_lg_u32 s{sR4}, 0')
    I('s_cbranch_scc1 k1_waitflag')
    I(f's_lshl_b32 s60, s{sCG}, 4'); I('v_mov_b32 v14, s60')
    I('s_mov_b32 s61, 0')
    g.label('k1_poll', nop=False)
    I(f'buffer_load_dword v10, v14, s[{SD}:{SD+3}], 0 offen sc1')
    I('s_waitcnt vmcnt(0)')
    I('v_readfirstlane_b32 s60, v10')
    I('s_add_u32 s61, s61, 1')
    I('s_cmp_ge_u32 s60, 16')
    I('s_cbranch_scc1 k1_pollok')
    I('s_sleep 2')
    I('s_cmp_lt_u32 s61, 0x400000')
    I('s_cbranch_scc1 k1_poll')
    g.label('k1_pollok', nop=False)
    I('v_and_b32 v14, 15, v1'); I('v_lshlrev_b32 v14, 2, v14')
    I(f's_lshl_b32 s62, s{sCG}, 7'); I(f's_add_u32 s62, s62, {FLAG_OFF}')
    I('s_mov_b32 s61, 0')
    g.label('k1_poll2', nop=False)
    I(f'buffer_load_dword v10, v14, s[{SW}:{SW+3}], s62 offen sc1')
    I('s_waitcnt vmcnt(0)')
    I('v_cmp_ne_u32 vcc, 1, v10')
    I('s_add_u32 s61, s61, 1')
    I('s_cmp_eq_u64 vcc, 0')
    I('s_cbranch_scc1 k1_poll2ok')
    I('s_sleep 1')
    I('s_cmp_lt_u32 s61, 0x400000')
    I('s_cbranch_scc1 k1_poll2')
    g.label('k1_poll2ok', nop=False)
    I(f'v_mov_b32 v14, {M_CNT+40}'); I('v_mov_b32 v15, 1')
    I('ds_write_b32 v14, v15')
    I('s_branch k1_polled')
    g.label('k1_waitflag', nop=False)
    I(f'v_mov_b32 v14, {M_CNT+40}')
    spin(14, 1)
    g.label('k1_polled', nop=False)
    mark(1)
    I(f's_lshl_b32 s60, s{sCG}, 16'); I(f's_lshl_b32 s61, s{sR4}, 10'); I('s_add_u32 s60, s60, s61'); I(f's_add_u32 s60, s60, {KVP_OFF}')
    I(f's_lshl_b32 s61, s{sCG}, 12'); I(f's_add_u32 s61, s61, {ZP_OFF}')
    for i in range(4):
        I(f'buffer_load_dwordx4 {vr(192+4*i,4)}, v4, s[{SW}:{SW+3}], s61 offen offset:{i*1024} sc1')
    for rbp in range(16):
        I(f'buffer_load_dwordx4 {vr(128+4*rbp,4)}, v4, s[{SW}:{SW+3}], s60 offen sc1')
        I('s_add_u32 s60, s60, 4096')
    for e in range(4):
        I(f'v_add_f32 v{192+e}, v{192+e}, v{196+e}'); I(f'v_add_f32 v{200+e}, v{200+e}, v{204+e}'); I(f'v_add_f32 v{192+e}, v{192+e}, v{200+e}')
    for sw in ('v_permlane32_swap_b32', 'v_permlane16_swap_b32'):
        for e in range(4): I(f'v_mov_b32 v{196+e}, v{192+e}')
        for e in range(4):
            I(f'{sw} v{192+e}, v{196+e}')
            I(f'v_add_f32 v{192+e}, v{192+e}, v{196+e}')
    I('v_cvt_pk_bf16_f32 v198, v192, v193'); I('v_cvt_pk_bf16_f32 v199, v194, v195')
    I('v_and_b32 v10, 15, v1')
    I('v_lshrrev_b32 v14, 3, v10'); I('v_lshlrev_b32 v14, 5, v14')
    I('v_lshrrev_b32 v15, 2, v10'); I('v_and_b32 v15, 1, v15'); I('v_lshlrev_b32 v15, 6, v15'); I('v_add_u32 v14, v14, v15')
    I('v_and_b32 v15, 3, v10'); I('v_lshlrev_b32 v15, 3, v15'); I('v_add_u32 v14, v14, v15')
    I(f's_lshl_b32 s60, s{sR4}, 7'); I(f's_add_u32 s60, s60, {M_ZL}'); I('v_add_u32 v14, s60, v14')
    I('ds_write_b64 v14, v[198:199]')
    for st in (8, 4, 2, 1):
        for i in range(st):
            for e in range(4): I(f'v_add_f32 v{128+4*i+e}, v{128+4*i+e}, v{128+4*(i+st)+e}')
    mark(1)
    I('v_cvt_pk_bf16_f32 v136, v128, v129'); I('v_cvt_pk_bf16_f32 v137, v130, v131')
    I(f's_lshl_b32 s60, s{sR4}, 4'); I(f's_add_u32 s60, s60, {M_KVL}')
    I('v_lshlrev_b32 v14, 6, v2'); I('v_lshlrev_b32 v10, 3, v3'); I('v_add_u32 v14, v14, v10'); I('v_add_u32 v14, s60, v14')
    I('ds_write_b64 v14, v[136:137]')
    sync4(4)
    I('v_lshrrev_b32 v16, 2, v2'); I('v_and_b32 v16, 1, v16')
    I('v_lshrrev_b32 v17, 3, v2'); I('v_lshlrev_b32 v17, 2, v17'); I('v_and_b32 v18, 3, v2'); I('v_add_u32 v17, v17, v18')
    I('v_lshlrev_b32 v18, 4, v16'); I('v_add_u32 v17, v17, v18'); I('v_lshlrev_b32 v17, 6, v17'); I(f'v_add_u32 v17, {M_KVL}, v17')
    I(f's_lshl_b32 s60, s{sR4}, 7'); I(f's_add_u32 s60, s60, {M_ZL}')
    I('v_lshlrev_b32 v18, 6, v3'); I('v_add_u32 v18, s60, v18')
    I(f'v_mov_b32 v19, {M_ZERO}')
    I('v_cmp_eq_u32 vcc, v16, v3')
    I('v_cndmask_b32 v17, v19, v17, vcc'); I('v_cndmask_b32 v18, v19, v18, vcc')
    for m in range(4):
        I(f'ds_read_b128 {vr(128+4*m,4)}, v17 offset:{m*16}')
        I(f'ds_read_b128 {vr(144+4*m,4)}, v18 offset:{m*16}')
    for m in range(4):
        I(f'v_mfma_f32_32x32x16_bf16 v[64:79], {vr(128+4*m,4)}, {vr(48+4*m,4)}, {"0" if m==0 else "v[64:79]"}')
        I(f'v_mfma_f32_32x32x16_bf16 v[80:95], {vr(144+4*m,4)}, {vr(48+4*m,4)}, {"0" if m==0 else "v[80:95]"}')
    I('v_add_f32 v16, 0x358637bd, v80')
    I('v_rcp_f32 v16, v16')
    for r in range(16): I(f'v_mul_f32 v{64+r}, v{64+r}, v16')
    for i in range(8): I(f'v_cvt_pk_bf16_f32 v{20+i}, v{64+2*i}, v{64+2*i+1}')
    I(f's_mul_i32 s60, s{sRT}, {NKS}'); I(f's_lshl_b32 s61, s{sCG}, 1'); I('s_add_u32 s60, s60, s61'); I('s_add_u32 s60, s60, 112')
    I('s_lshl_b32 s60, s60, 10')
    I(f'buffer_store_dwordx4 v[20:23], v4, s[{SW}:{SW+3}], s60 offen')
    I(f'buffer_store_dwordx4 v[24:27], v4, s[{SW}:{SW+3}], s60 offen offset:1024')
    mark(1)
    marks_out()
    if stamp: stamp_end(I, sWAVE, SW, STAMP_OFF)
    g.raw('k1_end:')
    I('s_endpgm')

K1_DESC = """
.amdhsa_kernel k1_kernel
  .amdhsa_next_free_vgpr 256
  .amdhsa_next_free_sgpr 100
  .amdhsa_accum_offset 256
  .amdhsa_group_segment_fixed_size 0
  .amdhsa_kernarg_size 96
  .amdhsa_user_sgpr_count 2
  .amdhsa_user_sgpr_kernarg_segment_ptr 1
  .amdhsa_system_sgpr_workgroup_id_x 1
  .amdhsa_float_denorm_mode_32 3
.end_amdhsa_kernel
"""
```

```python
from asmgen import *
from gen_k2 import HF_OFF, WF_OFF, KVP_OFF, ZP_OFF, FLAG_OFF, WS_SIZE, STAMP_OFF, NKS, LOG2E, stamp_begin, stamp_end

K1_LDS = 163840
SLOT = 45056
M = 3 * SLOT
M_CS = M + 12288
M_Z0 = M
M_CNT = M + 1024
M_ZERO = M + 1088
M_STAT = M + 8192
M_BIAS = M + 3072
M_RST = M + 4096
M_KVL = M + 5120
M_ZL = M + 7168
M_VX = 0
M_KVX = 32768
M_ZX = M_VX
M_DUMMY = M + 1152

XF = 128
WFR = 96
RSQ, RS1 = 3072, 3584

SX, SQ, SP, SO, S1, SB1, S2, SD, SW = 4, 8, 12, 16, 20, 24, 28, 32, 36
sWAVE, sRB, sCG, sR4, sTYPE, sHT0, sONES, sLOG, sMASK, sRT = 40, 41, 42, 43, 44, 45, 46, 47, 48, 49
sXE, sXO, sXM, sWA, sWB, sWM, sPP, sPUB, sPM = 52, 53, 54, 55, 56, 57, 58, 59, 51

P2_NS, P2_KS = 4, 8
def part2_setup(I):
    KS = P2_KS
    I('s_and_b32 s64, s2, 7'); I('s_lshl_b32 s64, s64, 2'); I('s_lshr_b32 s65, s2, 6'); I('s_add_u32 s64, s64, s65')
    I('s_lshr_b32 s65, s2, 3'); I('s_and_b32 s65, s65, 7')
    I('s_lshl_b32 s64, s64, 1'); I('s_lshl_b32 s65, s65, 1')
    I(f's_lshr_b32 s68, s{sWAVE}, 1'); I('s_add_u32 s68, s68, 2'); I('s_and_b32 s68, s68, 3')
    I('s_and_b32 s69, s68, 1')
    I('s_add_u32 s70, s64, s69'); I('s_add_u32 s71, s65, s69')
    I('s_cmp_ge_u32 s68, 2')
    I('s_cselect_b32 s70, s71, s70')
    I('s_cselect_b32 s71, 0x%x, %d' % (WF_OFF, HF_OFF))
    I(f's_mul_i32 s66, s70, {NKS*1024}'); I('s_add_u32 s66, s66, s71')
    I(f's_and_b32 s71, s{sWAVE}, 1'); I(f's_mul_i32 s71, s71, {KS*512}'); I('s_add_u32 s66, s66, s71')
    I(f's_mul_i32 s67, s68, {KS*1024}'); I('s_add_u32 s67, s67, s71')

def p2_issue(I, s):
    KS, NS = P2_KS, P2_NS
    I(f's_add_u32 m0, s67, {(s % NS) * KS * 4096}')
    for d in range(KS // 2):
        I(f'buffer_load_dwordx4 v4, s[{SW}:{SW+3}], s66 offen offset:{d*1024} sc1 lds')
    I(f's_add_u32 s66, s66, {KS*1024}')

def part2_pre(I, g, path):
    part2_setup(I)
    I(f's_load_dwordx4 s[68:71], s[0:1], 64')
    if path == 'A':
        I('v_lshlrev_b32 v14, 2, v1')
        I('s_mov_b32 s61, 0')
        g.label('k2_pollc', nop=False)
        I(f'buffer_load_dword v10, v14, s[{SD}:{SD+3}], 0 offen sc1')
        I('v_and_b32 v15, 3, v1')
        I('s_waitcnt vmcnt(0)')
        I('v_cmp_gt_u32 vcc, 16, v10')
        I('v_cmp_eq_u32 s[62:63], 0, v15')
        I('s_add_u32 s61, s61, 1')
        I('s_and_b64 vcc, vcc, s[62:63]')
        I('s_cmp_eq_u64 vcc, 0')
        I('s_cbranch_scc1 k2_pollcok')
        I('s_sleep 2')
        I('s_cmp_lt_u32 s61, 0x400000')
        I('s_cbranch_scc1 k2_pollc')
        g.label('k2_pollcok', nop=False)
        I(f'v_mov_b32 v14, {M_CNT+4}')
        I('s_mov_b32 s61, 0')
        g.label('k2_spk', nop=False)
        I('ds_read_b32 v15, v14')
        I('s_waitcnt lgkmcnt(0)')
        I('v_readfirstlane_b32 s60, v15')
        I('s_add_u32 s61, s61, 1')
        I('s_cmp_ge_u32 s60, 1')
        I('s_cbranch_scc1 k2_spkd')
        I('s_sleep 1')
        I('s_cmp_lt_u32 s61, 0x400000')
        I('s_cbranch_scc1 k2_spk')
        g.label('k2_spkd', nop=False)
        for s in range(P2_NS - 1): p2_issue(I, s)
        I(f's_cmp_lg_u32 s{sWAVE}, 0')
        I('s_cbranch_scc1 k2_hok')
        I('v_and_b32 v14, 15, v1'); I('v_lshlrev_b32 v14, 2, v14')
        I('s_lshr_b32 s62, s64, 2'); I('s_lshl_b32 s62, s62, 7'); I(f's_add_u32 s62, s62, {FLAG_OFF+0x1000}')
        I('s_mov_b32 s61, 0')
        g.label('k2_pollh', nop=False)
        I(f'buffer_load_dword v10, v14, s[{SW}:{SW+3}], s62 offen sc1')
        I('s_waitcnt vmcnt(0)')
        I('v_cmp_ne_u32 vcc, 1, v10')
        I('s_add_u32 s61, s61, 1')
        I('s_cmp_eq_u64 vcc, 0')
        I('s_cbranch_scc1 k2_hok')
        I('s_sleep 2')
        I('s_cmp_lt_u32 s61, 0x400000')
        I('s_cbranch_scc1 k2_pollh')
        g.label('k2_hok', nop=False)

def part2_main(I, g, stamp, marks_out, mark, path, hook):
    KS, NS = P2_KS, P2_NS
    NST, SB, ND = NKS // KS, KS * 4096, KS // 2
    g.forget_pending()
    dt = {}
    if path == 'A':
        for s_ in range(NS - 1):
            for d in range(ND): g.vq.append(set()); g.vm_issued += 1
            dt[s_] = g.vm_tag()
    I('s_waitcnt lgkmcnt(0)')
    mark(3)
    I('s_barrier')
    mark(3)
    if path == 'B':
        for s in range(NS - 1):
            p2_issue(I, s); dt[s] = g.vm_tag()
    I(f's_mov_b32 s{S2}, s68'); I(f's_mov_b32 s{S2+1}, s69'); I(f's_mov_b32 s{S2+2}, 1024'); I(f's_mov_b32 s{S2+3}, 0x20000')
    I(f's_mov_b32 s{SO}, s70'); I(f's_mov_b32 s{SO+1}, s71'); I(f's_mov_b32 s{SO+2}, 0x200000'); I(f's_mov_b32 s{SO+3}, 0x20000')
    I(f's_lshr_b32 s68, s{sR4}, 1'); I(f's_and_b32 s69, s{sR4}, 1')
    I('s_add_u32 s60, s64, s68'); I('s_lshl_b32 s60, s60, 5')
    I('v_add_u32 v6, s60, v2'); I('v_lshlrev_b32 v6, 10, v6')
    I('v_lshlrev_b32 v5, 5, v3')
    I('s_add_u32 s60, s65, s69'); I('s_lshl_b32 s60, s60, 6'); I(f's_lshl_b32 s61, s{sTYPE}, 4'); I('s_add_u32 s60, s60, s61')
    I('v_add_u32 v5, s60, v5'); I('v_add_u32 v6, v6, v5')
    I(f's_mul_i32 s60, s68, {KS*1024}'); I(f's_mul_i32 s61, s{sTYPE}, {ND*1024}'); I('s_add_u32 s60, s60, s61')
    I('v_add_u32 v16, s60, v4')
    I(f's_mul_i32 s60, s69, {KS*1024}'); I('s_add_u32 s60, s60, s61'); I(f's_add_u32 s60, s60, {2*KS*1024}')
    I('v_add_u32 v19, s60, v4')
    GRP = 65536 // SB
    for a in (1, 2):
        I(f'v_add_u32 v{16+a}, {a*GRP*SB}, v16'); I(f'v_add_u32 v{19+a}, {a*GRP*SB}, v19')
    I(f's_xor_b32 s60, s{sWAVE}, 4'); I('s_lshl_b32 s60, s60, 12'); I('v_add_u32 v22, s60, v4')
    I(f's_lshl_b32 s60, s{sWAVE}, 12'); I('v_add_u32 v23, s60, v4')
    I('v_and_b32 v28, 15, v1'); I('v_lshlrev_b32 v28, 2, v28')
    I('s_lshr_b32 s62, s64, 2'); I('s_lshl_b32 s62, s62, 7'); I(f's_add_u32 s62, s62, {FLAG_OFF+0x2000}')
    FB = 128
    def fr(buf, kk, hw): return FB + buf * ND * 8 + kk * 8 + hw * 4
    A1, A2 = 64, 80
    NH = 112 // KS
    def mfmas(s):
        acc = A1 if s < NH else A2
        for kk in range(ND):
            c = '0' if (s in (0, NH) and kk == 0) else vr(acc, 16)
            I(f'v_mfma_f32_32x32x16_bf16 {vr(acc,16)}, {vr(fr(s&1,kk,1),4)}, {vr(fr(s&1,kk,0),4)}, {c}')
    for s in range(NST):
        g.wait_vm(dt[s], ' lgkmcnt(0)')
        I('s_barrier')
        if s == 0: mark(3)
        if s in (0, 3, 5, 7, 9, 11, 12, 15): mark(4)
        slot = s % NS
        a, b = slot // GRP, slot % GRP
        for kk in range(ND):
            I(f'ds_read_b128 {vr(fr(s&1,kk,0),4)}, v{16+a} offset:{b*SB+kk*1024}')
            I(f'ds_read_b128 {vr(fr(s&1,kk,1),4)}, v{19+a} offset:{b*SB+kk*1024}')
        if s + NS - 1 == NH:
            I('s_mov_b32 s61, 0')
            g.label(f'k2_pollo{path}', nop=False)
            I('v_cmp_ne_u32 vcc, 1, v29')
            I('s_add_u32 s61, s61, 1')
            I('s_cmp_eq_u64 vcc, 0')
            I(f's_cbranch_scc1 k2_ook{path}')
            svq = (list(g.vq), g.vm_issued)
            I(f'buffer_load_dword v29, v28, s[{SW}:{SW+3}], s62 offen sc1')
            I('s_waitcnt vmcnt(0)')
            g.vq, g.vm_issued = list(svq[0]), svq[1]
            I('s_cmp_lt_u32 s61, 0x400000')
            I(f's_cbranch_scc1 k2_pollo{path}')
            g.label(f'k2_ook{path}', nop=False)
        if s + NS - 1 < NST:
            p2_issue(I, s + NS - 1); dt[s + NS - 1] = g.vm_tag()
        if s + NS - 1 == NH - 2:
            I(f'buffer_load_dword v29, v28, s[{SW}:{SW+3}], s62 offen sc1')
        if s == NST - 4:
            I(f'buffer_load_dwordx4 v[8:11], v6, s[{SX}:{SX+3}], 0 offen')
            I(f'buffer_load_dwordx4 v[12:15], v5, s[{S2}:{S2+3}], 0 offen')
        if s > 0: mfmas(s - 1)
        hook(s)
    mfmas(NST - 1)
    mark(3)
    I('s_barrier')
    I('s_mov_b32 s35, 0xffff0000' if False else f's_mov_b32 s60, 0x%x' % (LOG2E | 0x80000000))
    for kg in ([0] if path == 'A' else [1]):
        keep, give = 8 * kg, 8 * (1 - kg)
        for a, acc in enumerate((A1, A2)):
            for q in range(2):
                I(f'ds_write_b128 v22, {vr(acc+give+4*q,4)} offset:{(a*2+q)*1024}')
        I('s_waitcnt lgkmcnt(0)')
        I('s_barrier')
        T = 96
        for a in range(2):
            for q in range(2):
                I(f'ds_read_b128 {vr(T+a*8+4*q,4)}, v23 offset:{(a*2+q)*1024}')
        for r in range(8): I(f'v_add_f32 v{A1+keep+r}, v{A1+keep+r}, v{T+r}')
        for r in range(8): I(f'v_add_f32 v{A2+keep+r}, v{A2+keep+r}, v{T+8+r}')
        U = 112
        def rnd(a, b, tmp):
            I(f'v_cvt_pk_bf16_f32 v{tmp}, v{a}, v{b}')
            I(f'v_lshlrev_b32 v{a}, 16, v{tmp}')
            I(f'v_and_b32 v{b}, s{sMASK}, v{tmp}')
        P = [(A1 + keep + 2 * i, A1 + keep + 2 * i + 1, A2 + keep + 2 * i, A2 + keep + 2 * i + 1,
              U + 4 * i, U + 4 * i + 1, U + 4 * i + 2, U + 4 * i + 3, i) for i in range(4)]
        for (a, b, c, d, t0, t1, t2, t3, i) in P: rnd(a, b, t0)
        for (a, b, c, d, t0, t1, t2, t3, i) in P:
            I(f'v_lshlrev_b32 v{t1}, 16, v{12+i}'); I(f'v_and_b32 v{t2}, s{sMASK}, v{12+i}')
            I(f'v_add_f32 v{a}, v{a}, v{t1}'); I(f'v_add_f32 v{b}, v{b}, v{t2}')
        for (a, b, c, d, t0, t1, t2, t3, i) in P: rnd(a, b, t0)
        for (a, b, c, d, t0, t1, t2, t3, i) in P:
            I(f'v_mul_f32 v{t1}, s60, v{a}'); I(f'v_mul_f32 v{t2}, s60, v{b}')
            I(f'v_exp_f32 v{t1}, v{t1}'); I(f'v_exp_f32 v{t2}, v{t2}')
        for (a, b, c, d, t0, t1, t2, t3, i) in P:
            I(f'v_add_f32 v{t1}, 1.0, v{t1}'); I(f'v_add_f32 v{t2}, 1.0, v{t2}')
            I(f'v_rcp_f32 v{t1}, v{t1}'); I(f'v_rcp_f32 v{t2}, v{t2}')
        for (a, b, c, d, t0, t1, t2, t3, i) in P:
            I(f'v_mul_f32 v{a}, v{a}, v{t1}'); I(f'v_mul_f32 v{b}, v{b}, v{t2}')
            rnd(c, d, t3)
        for (a, b, c, d, t0, t1, t2, t3, i) in P: rnd(a, b, t0)
        for (a, b, c, d, t0, t1, t2, t3, i) in P:
            I(f'v_mul_f32 v{a}, v{a}, v{c}'); I(f'v_mul_f32 v{b}, v{b}, v{d}')
        for (a, b, c, d, t0, t1, t2, t3, i) in P: rnd(a, b, t0)
        for (a, b, c, d, t0, t1, t2, t3, i) in P:
            I(f'v_lshlrev_b32 v{t1}, 16, v{8+i}'); I(f'v_and_b32 v{t2}, s{sMASK}, v{8+i}')
            I(f'v_add_f32 v{a}, v{a}, v{t1}'); I(f'v_add_f32 v{b}, v{b}, v{t2}')
            I(f'v_cvt_pk_bf16_f32 v{24+i}, v{a}, v{b}')
        I(f'buffer_store_dwordx4 v[24:27], v6, s[{SO}:{SO+3}], 0 offen')
        if stamp:
            marks_out(keep=True)
            stamp_end(I, sWAVE, SW, STAMP_OFF)
        I('s_endpgm')

def gen_k1(g, stamp=False, dbg=0, xmap=0, fused=False, kname='k1_kernel'):
    I = g.I
    g.raw('.p2align 8')
    g.raw(kname + ':')
    SC = ' sc1' if fused else ''
    g.reset_state()
    I('s_cmp_ge_u32 s2, 256')
    I('s_cbranch_scc1 k1_end')
    if stamp: stamp_begin(I)
    I(f's_load_dwordx4 s[64:67], s[0:1], 0')
    I(f's_load_dwordx2 s[{S1}:{S1+1}], s[0:1], 40')
    I('v_lshrrev_b32 v4, 6, v0')
    I('v_and_b32 v1, 63, v0')
    I(f'v_readfirstlane_b32 s{sWAVE}, v4')
    I('s_and_b32 s50, s2, 7')
    I('s_lshr_b32 s51, s2, 3')
    if xmap == 0:
        I('s_and_b32 s60, s50, 1'); I('s_lshl_b32 s60, s60, 3'); I('s_and_b32 s61, s51, 7')
        I(f's_add_u32 s{sRB}, s60, s61')
        I('s_lshr_b32 s60, s50, 1'); I('s_lshl_b32 s60, s60, 2'); I('s_lshr_b32 s61, s51, 3')
        I(f's_add_u32 s{sCG}, s60, s61')
    else:
        I(f's_and_b32 s{sRB}, s51, 15')
        I('s_lshl_b32 s60, s50, 1'); I('s_lshr_b32 s61, s51, 4')
        I(f's_add_u32 s{sCG}, s60, s61')
    I(f's_and_b32 s{sR4}, s{sWAVE}, 3')
    I(f's_lshr_b32 s{sTYPE}, s{sWAVE}, 2')
    I('v_lshrrev_b32 v8, 3, v1'); I('v_lshlrev_b32 v8, 10, v8')
    I('v_and_b32 v9, 7, v1'); I('v_lshrrev_b32 v6, 4, v1'); I('v_xor_b32 v9, v9, v6'); I('v_lshlrev_b32 v9, 4, v9')
    I('v_add_u32 v8, v8, v9'); I('v_xor_b32 v9, 64, v8')
    I('v_lshrrev_b32 v10, 2, v1'); I(f'v_mul_u32_u24 v10, {RSQ}, v10'); I('v_and_b32 v6, 3, v1'); I('v_lshlrev_b32 v6, 4, v6')
    I('v_add_u32 v10, v10, v6')
    I(f's_lshl_b32 s{sXE}, s{sRB}, 17'); I(f's_lshl_b32 s60, s{sWAVE}, 14'); I(f's_add_u32 s{sXE}, s{sXE}, s60')
    I(f's_add_u32 s{sXO}, s{sXE}, 8192')
    I(f's_lshl_b32 s{sXM}, s{sWAVE}, 11')
    I(f's_mul_i32 s{sWA}, s{sR4}, {16*RSQ}'); I(f's_lshl_b32 s60, s{sCG}, 6'); I(f's_add_u32 s{sWB}, s{sWA}, s60')
    I(f's_add_u32 s60, s{sTYPE}, 1'); I('s_lshl_b32 s60, s60, 10'); I(f's_add_u32 s{sWA}, s{sWB}, s60')
    I(f's_lshl_b32 s{sWM}, s{sR4}, 10')
    I(f's_lshl_b32 s{sPM}, s{sR4}, 11')
    I(f's_lshr_b32 s60, s{sCG}, 2'); I('s_mul_i32 s60, s60, 14'); I(f's_and_b32 s61, s{sCG}, 3'); I('s_lshl_b32 s61, s61, 2')
    I(f's_add_u32 s{sHT0}, s60, s61')
    I('v_lshrrev_b32 v11, 3, v1'); I(f'v_mul_u32_u24 v11, {RS1}, v11'); I('v_add_u32 v11, v11, v6')
    I('v_lshrrev_b32 v6, 2, v1'); I('v_lshrrev_b32 v7, 4, v1'); I('v_xor_b32 v6, v6, v7'); I('v_and_b32 v6, 1, v6')
    I('v_lshlrev_b32 v6, 6, v6'); I('v_add_u32 v11, v11, v6')
    I(f's_mul_i32 s{sPP}, s{sR4}, {16*RS1}'); I(f's_lshl_b32 s60, s{sHT0}, 6'); I(f's_add_u32 s{sPP}, s{sPP}, s60')
    I(f's_lshl_b32 s60, s{sTYPE}, 7'); I(f's_add_u32 s{sPP}, s{sPP}, s60')
    I('s_waitcnt lgkmcnt(0)')
    I(f's_mov_b32 s{S1+2}, {512*3584}'); I(f's_mov_b32 s{S1+3}, 0x20000')
    I(f's_mov_b32 s{SX}, s64'); I(f's_mov_b32 s{SX+1}, s65'); I(f's_mov_b32 s{SX+2}, 0x200000'); I(f's_mov_b32 s{SX+3}, 0x20000')
    I(f's_mov_b32 s{SQ}, s66'); I(f's_mov_b32 s{SQ+1}, s67'); I(f's_mov_b32 s{SQ+2}, {512*3072}'); I(f's_mov_b32 s{SQ+3}, 0x20000')
    for srd, off in ((SP, 16), (SO, 24), (SB1, 48), (S2, 56), (SD, 80), (SW, 88)):
        I(f's_load_dwordx2 s[{srd}:{srd+1}], s[0:1], {off}')
    I(f's_cmp_eq_u32 s{sTYPE}, 1')
    I('s_cbranch_scc1 k1_pathB')
    saved = (list(g.vq), list(g.lq), g.vm_issued)

    mk = [0]
    def mark(tag=0):
        if stamp and tag == ((dbg >> 8) & 0xff) and mk[0] < 8:
            I(f's_memtime s[{74+2*mk[0]}:{75+2*mk[0]}]'); mk[0] += 1
    def marks_out(keep=False):
        if not stamp: return
        I('s_waitcnt lgkmcnt(0)')
        for i in range(8):
            I(f's_sub_u32 s{74+2*i}, s{74+2*i}, s92')
            I(f'v_mov_b32 v{16+i}, s{74+2*i}')
        I('s_lshl_b32 s98, s2, 3'); I(f's_add_u32 s98, s98, s{sWAVE}'); I('s_lshl_b32 s98, s98, 5')
        I('s_add_u32 s98, s98, 0x%x' % (STAMP_OFF + 0x20000))
        I('v_mov_b32 v24, s98')
        I(f's_mov_b32 s{SW+2}, 0x1000000')
        I(f'buffer_store_dwordx4 v[16:19], v24, s[{SW}:{SW+3}], 0 offen')
        I(f'buffer_store_dwordx4 v[20:23], v24, s[{SW}:{SW+3}], 0 offen offset:16')
        mk[0] = 0

    def dma_stage(j, path):
        sb = (j % 3) * SLOT
        G = []
        for e in range(2):
            G.append([f's_add_u32 m0, s{sXM}, {sb + e*1024}',
                      f'buffer_load_dwordx4 v{8+e}, s[{SX}:{SX+3}], s{sXE+e} offen lds',
                      f's_add_u32 s{sXE+e}, s{sXE+e}, 128'])
        G.append([f's_add_u32 m0, s{sWM}, {sb + 16384 + (0 if path == "A" else 4096)}',
                  f'buffer_load_dwordx4 v10, s[{SQ}:{SQ+3}], s{sWA} offen lds',
                  f's_add_u32 s{sWA}, s{sWA}, {64*RSQ}'])
        if path == 'B':
            G.append([f's_add_u32 m0, s{sWM}, {sb + 16384 + 8192}',
                      f'buffer_load_dwordx4 v10, s[{SQ}:{SQ+3}], s{sWB} offen lds',
                      f's_add_u32 s{sWB}, s{sWB}, {64*RSQ}'])
        pb = sb + 28672 + (0 if path == 'A' else 8192)
        for i in range(2):
            G.append([f's_add_u32 m0, s{sPM}, {pb + i*1024}',
                      f'buffer_load_dwordx4 v11, s[{S1}:{S1+3}], s{sPP} offen lds',
                      f's_add_u32 s{sPP}, s{sPP}, {8*RS1 if i == 0 else 56*RS1}'])
        G[-1] = G[-1] + [f'__tag__{j}']
        return G

    def late_setup():
        I('v_and_b32 v2, 31, v1')
        I('v_lshrrev_b32 v3, 5, v1')
        I('v_lshlrev_b32 v4, 4, v1')
        I(f's_lshl_b32 s{sRT}, s{sRB}, 2'); I(f's_add_u32 s{sRT}, s{sRT}, s{sR4}')
        I(f's_mov_b32 s{sONES}, 0x3f803f80')
        I(f's_mov_b32 s{sLOG}, 0x%x' % LOG2E)
        I(f's_mov_b32 s{sMASK}, 0xffff0000')
        I('s_waitcnt lgkmcnt(0)')
        for srd, size in ((SP, 16384), (SO, 512 * 1024), (SB1, 3584), (S2, 1792 * 1024), (SD, 256), (SW, WS_SIZE)):
            I(f's_mov_b32 s{srd+2}, {size}'); I(f's_mov_b32 s{srd+3}, 0x20000')

    def side_job(idx_expr_s, vt, vh, va, sdst):
        I('s_and_b32 s62, s2, 15'); I('s_mul_i32 s62, s62, 9'); I(f's_add_u32 s62, s62, {idx_expr_s}')
        I('s_lshr_b32 s63, s2, 4')
        I(f'v_lshrrev_b32 v{va}, 2, v2'); I(f'v_and_b32 v{va}, 1, v{va}'); I(f'v_lshlrev_b32 v{va}, 4, v{va}')
        I(f'v_lshrrev_b32 v{va+1}, 3, v2'); I(f'v_lshlrev_b32 v{va+1}, 2, v{va+1}'); I(f'v_add_u32 v{va}, v{va}, v{va+1}')
        I(f'v_and_b32 v{va+1}, 3, v2'); I(f'v_add_u32 v{va}, v{va}, v{va+1}')
        I('s_lshl_b32 s64, s63, 5'); I(f'v_add_u32 v{va}, s64, v{va}'); I(f'v_lshlrev_b32 v{va}, 1, v{va}')
        I('s_lshl_b32 s64, s62, 4')
        I('s_sub_u32 s65, s62, 112'); I('s_lshr_b32 s66, s65, 1'); I('s_lshl_b32 s66, s66, 5'); I('s_and_b32 s65, s65, 1')
        I('s_lshl_b32 s65, s65, 3'); I('s_add_u32 s65, s65, s66')
        I('s_cmp_lt_u32 s62, 112')
        I('s_cselect_b32 s64, s64, s65')
        I('s_cselect_b32 s65, 12, 14')
        I('s_cselect_b32 s66, 2, 1')
        I(f's_cselect_b32 s68, s{S2}, s{SO}'); I(f's_cselect_b32 s69, s{S2+1}, s{SO+1}')
        I(f's_cselect_b32 s70, s{S2+2}, s{SO+2}'); I('s_mov_b32 s71, 0x20000')
        I('s_lshl_b32 s66, s66, 12')
        I('s_lshl_b32 s64, s64, 10')
        I(f'v_lshlrev_b32 v{va+1}, s65, v3'); I(f'v_add_u32 v{va}, v{va}, v{va+1}'); I(f'v_add_u32 v{va}, s64, v{va}')
        for q in range(4):
            so = '0' if q < 2 else 's66'
            I(f'buffer_load_ushort v{vt+q}, v{va}, s[68:71], {so} offen offset:{(2*(q&1))*1024}')
            I(f'buffer_load_ushort v{vh+q}, v{va}, s[68:71], {so} offen offset:{(2*(q&1)+1)*1024}')
        I(f's_mul_i32 s{sdst}, s63, {NKS}'); I(f's_add_u32 s{sdst}, s{sdst}, s62'); I(f's_lshl_b32 s{sdst}, s{sdst}, 10')
        I(f's_add_u32 s{sdst}, s{sdst}, {WF_OFF}')
    def side_store(vt, vh, sdst):
        for q in range(4): I(f'v_lshl_or_b32 v{vt+q}, v{vh+q}, 16, v{vt+q}')
        I(f'buffer_store_dwordx4 v[{vt}:{vt+3}], v4, s[{SW}:{SW+3}], s{sdst} offen{SC}')

    def wphi_load():
        I('v_lshrrev_b32 v13, 2, v2'); I('v_and_b32 v13, 1, v13')
        I(f's_lshl_b32 s60, s{sCG}, 10')
        I('v_lshlrev_b32 v14, 9, v13'); I('v_add_u32 v14, s60, v14')
        I('v_lshlrev_b32 v15, 7, v3'); I('v_add_u32 v14, v14, v15')
        I('v_lshrrev_b32 v15, 3, v2'); I('v_lshlrev_b32 v15, 3, v15'); I('v_add_u32 v14, v14, v15')
        I('v_and_b32 v15, 3, v2'); I('v_lshlrev_b32 v15, 1, v15'); I('v_add_u32 v14, v14, v15')
        for q in range(4):
            j = 2 * q
            I(f'buffer_load_ushort v{56+q}, v14, s[{SP}:{SP+3}], 0 offen offset:{(j&3)*32+(j>>2)*256}')
            I(f'buffer_load_ushort v{60+q}, v14, s[{SP}:{SP+3}], 0 offen offset:{((j+1)&3)*32+(j>>2)*256}')
    def wphi_build():
        for q in range(4): I(f'v_lshl_or_b32 v{60+q}, v{60+q}, 16, v{56+q}')
        I('v_cmp_eq_u32 vcc, 0, v13')
        for q in range(4): I(f'v_cndmask_b32 v{56+q}, 0, v{60+q}, vcc')
        for q in range(4): I(f'v_cndmask_b32 v{60+q}, v{60+q}, 0, vcc')

    def tr_addr(dst, pair):
        I(f'v_lshlrev_b32 v{dst}, {10 if pair else 9}, v3')
        I('v_and_b32 v14, 15, v1'); I('v_lshrrev_b32 v15, 2, v14'); I(f'v_lshlrev_b32 v15, {7 if pair else 6}, v15'); I(f'v_add_u32 v{dst}, v{dst}, v15')
        I('v_and_b32 v15, 3, v1'); I('v_lshlrev_b32 v15, 3, v15'); I(f'v_add_u32 v{dst}, v{dst}, v15')
        I('v_and_b32 v15, 16, v1'); I('v_lshlrev_b32 v15, 1, v15'); I(f'v_add_u32 v{dst}, v{dst}, v15')
        if pair:
            I('v_and_b32 v15, 8, v1'); I('v_lshlrev_b32 v15, 3, v15'); I(f'v_add_u32 v{dst}, v{dst}, v15')

    def bmask(dst):
        I('v_and_b32 v14, 15, v1'); I('v_lshrrev_b32 v15, 4, v1'); I('v_and_b32 v15, 1, v15')
        I('v_cmp_eq_u32 vcc, v14, v15')
        I(f'v_mov_b32 v14, s{sONES}')
        for q in range(4): I(f'v_cndmask_b32 v{dst+q}, 0, v14, vcc')

    def sum16_addr(dst, base):
        I('v_and_b32 v14, 15, v1'); I(f'v_lshlrev_b32 v{dst}, 6, v14'); I('v_lshrrev_b32 v15, 4, v1'); I('v_lshlrev_b32 v15, 4, v15')
        I(f'v_add_u32 v{dst}, v{dst}, v15'); I(f'v_add_u32 v{dst}, {base}, v{dst}')
        I('v_cmp_gt_u32 vcc, 2, v14')

    def cs_add(regs, slot):
        sum16_addr(12, M_CS + slot * 512)
        I(f's_lshl_b32 s60, s{sR4}, 7'); I('v_add_u32 v12, s60, v12')
        I('s_and_saveexec_b64 s[62:63], vcc')
        for i, rb_ in enumerate(regs):
            I(f'ds_write_b128 v12, {vr(rb_,4)} offset:{i*512}')
        I('s_mov_b64 exec, s[62:63]')

    def read_cs(slot, dst, tmp):
        I('v_lshlrev_b32 v14, 4, v3'); I(f'v_add_u32 v14, {M_CS + slot*512}, v14')
        for w in range(4):
            for q in range(4):
                I(f'ds_read_b128 {vr((dst if w == 0 else tmp+16*(w-1))+4*q,4)}, v14 offset:{w*128+q*32}')
        for r in range(0, 16, 2):
            I(f'v_pk_add_f32 {vr(dst+r,2)}, {vr(dst+r,2)}, {vr(tmp+r,2)}')
            I(f'v_pk_add_f32 {vr(tmp+16+r,2)}, {vr(tmp+16+r,2)}, {vr(tmp+32+r,2)}')
            I(f'v_pk_add_f32 {vr(dst+r,2)}, {vr(dst+r,2)}, {vr(tmp+16+r,2)}')

    def phase0(path, hook):
        A = path == 'A'
        n64 = 1 if A else 2
        nt = n64 + 2
        XR, WR = 176, 192
        CSF = 240 if A else 128
        CSA = 160
        I(f's_lshl_b32 s60, s{sR4}, 12')
        I('v_lshlrev_b32 v6, 7, v2'); I('v_add_u32 v6, s60, v6')
        I('v_lshrrev_b32 v7, 1, v2'); I('v_and_b32 v7, 7, v7')
        for j in range(4):
            I(f'v_add_u32 v{16+j}, {2*j}, v3'); I(f'v_xor_b32 v{16+j}, v{16+j}, v7'); I(f'v_lshlrev_b32 v{16+j}, 4, v{16+j}')
            I(f'v_add_u32 v{16+j}, v{16+j}, v6')
        tr_addr(20, False)
        I(f'v_add_u32 v20, {16384 + (0 if A else 4096)}, v20')
        I(f's_lshl_b32 s60, s{sR4}, 10'); I('v_add_u32 v21, s60, v20')
        tr_addr(22, True)
        I(f'v_add_u32 v22, {28672 + (0 if A else 8192)}, v22'); I('v_xor_b32 v23, 64, v22')
        I(f's_lshl_b32 s60, s{sR4}, 11'); I('v_add_u32 v24, s60, v22'); I('v_add_u32 v25, s60, v23')
        for k in (1, 2):
            for i in range(10): I(f'v_add_u32 v{16+10*k+i}, {k*SLOT}, v{16+i}')
        bmask(46)
        for r in (6, 7, 54, 55): I(f'v_mov_b32 v{r}, 0')
        for r in range(CSA, CSA + 4 * nt): I(f'v_mov_b32 v{r}, 0')
        for s in range(8):
            g.wait_vm(tags[s], ' lgkmcnt(0)')
            I('s_barrier')
            if s == 0: mark()
            mark(2)
            ab = 16 + 10 * (s % 3)
            G = []
            if s + 2 < 8: G = dma_stage(s + 2, path)
            if dbg & 16: G = [[l for l in grp if not l.startswith('buffer_load')] for grp in G]
            G += hook(s)
            gi = [0]
            def dma(n=1):
                for _ in range(n):
                    if gi[0] < len(G):
                        for l in G[gi[0]]: I(l)
                        gi[0] += 1
            def wf(kk, e): return WR + (kk * nt + e) * 4
            def rd_list(kk):
                if dbg & 8: return []
                L = [f'ds_read_b128 {vr(XR+4*kk,4)}, v{ab+kk}']
                for e in range(n64):
                    L.append(f'ds_read_b64_tr_b16 {vr(wf(kk,e),2)}, v{ab+4} offset:{e*4096+kk*1024}')
                    L.append(f'ds_read_b64_tr_b16 {vr(wf(kk,e)+2,2)}, v{ab+4} offset:{e*4096+kk*1024+256}')
                for e in range(2):
                    L.append(f'ds_read_b64_tr_b16 {vr(wf(kk,n64+e),2)}, v{ab+6+e} offset:{kk*2048}')
                    L.append(f'ds_read_b64_tr_b16 {vr(wf(kk,n64+e)+2,2)}, v{ab+6+e} offset:{kk*2048+512}')
                return L
            def mf_list(t):
                if dbg & 4 or t < 0: return []
                kk = t % 4
                x = vr(XR + 4 * kk, 4)
                L = []
                for e in range(nt):
                    acc = 64 + 16 * e
                    c = '0' if t == 0 else vr(acc, 16)
                    if (not A) and e == 0: L.append(f'v_mfma_f32_32x32x16_bf16 {vr(acc,16)}, {x}, {vr(wf(kk,e),4)}, {c}')
                    else: L.append(f'v_mfma_f32_32x32x16_bf16 {vr(acc,16)}, {vr(wf(kk,e),4)}, {x}, {c}')
                return L
            def st_list(t):
                kk = t % 4
                if t < 0 or (kk & 1) != (0 if A else 1) or (dbg & 2): return []
                L = []
                for q in range(4):
                    xr = XR + 4 * kk + q
                    L += [f'v_lshlrev_b32 v{50+(q&1)*2}, 16, v{xr}', f'v_and_b32 v{51+(q&1)*2}, s{sMASK}, v{xr}',
                          f'v_add_f32 v6, v6, v{50+(q&1)*2}', f'v_fmac_f32 v54, v{50+(q&1)*2}, v{50+(q&1)*2}',
                          f'v_add_f32 v7, v7, v{51+(q&1)*2}', f'v_fmac_f32 v55, v{51+(q&1)*2}, v{51+(q&1)*2}']
                return L
            def csmf(t):
                if dbg & 4 or t < 0: return
                kk = t % 4
                lab = f'k1_cs{path}{t}'
                I(f's_cmp_lg_u32 s{sR4}, {kk}')
                I(f's_cbranch_scc1 {lab}')
                g.skippable([f'v_mfma_f32_16x16x32_bf16 {vr(CSA+4*e,4)}, {vr(wf(kk,e),4)}, v[46:49], {vr(CSA+4*e,4)}' for e in range(nt)])
                g.raw(lab + ':')
            def step(tm, rk):
                Mx = mf_list(tm); R = rd_list(rk) if rk is not None else []; S = st_list(tm)
                n = max(len(Mx), 1)
                for i in range(n):
                    if i < len(Mx): I(Mx[i])
                    for l in R[i * len(R) // n:(i + 1) * len(R) // n]: I(l)
                    for l in S[i * len(S) // n:(i + 1) * len(S) // n]: I(l)
                csmf(tm)
            for j in range(4):
                dma(1 if j < 2 else 2)
                step(4 * s - 2 + j, j)
            dma(9)
            if s == 7:
                step(30, None); step(31, None)
        I('v_add_f32 v6, v6, v7'); I('v_add_f32 v7, v54, v55')
        I(f's_lshl_b32 s60, s{sR4}, 9'); I(f's_add_u32 s60, s60, {M_STAT + (0 if A else 2048)}')
        I('v_lshlrev_b32 v12, 4, v2'); I('v_lshlrev_b32 v13, 3, v3'); I('v_add_u32 v12, v12, v13'); I('v_add_u32 v12, s60, v12')
        I('ds_write_b64 v12, v[6:7]')

    cnt_id = [0]
    def signal(addr_off):
        I('s_waitcnt lgkmcnt(0)')
        I(f'v_mov_b32 v14, {addr_off}'); I('v_mov_b32 v15, 1')
        I('s_mov_b64 exec, 1')
        I('ds_add_u32 v14, v15')
        I('s_mov_b64 exec, -1')
    def spin(addr_v, n):
        cnt_id[0] += 1
        L = f'k1_sp{cnt_id[0]}'
        I('s_mov_b32 s61, 0')
        g.label(L, nop=False)
        I(f'ds_read_b32 v15, v{addr_v}')
        I('s_waitcnt lgkmcnt(0)')
        I('v_readfirstlane_b32 s60, v15')
        I('s_add_u32 s61, s61, 1')
        I(f's_cmp_ge_u32 s60, {n}')
        I(f's_cbranch_scc1 {L}d')
        I('s_cmp_lt_u32 s61, 0x400000')
        I(f's_cbranch_scc1 {L}')
        g.label(L + 'd', nop=False)
    def sync4(cnt_off):
        signal(M_CNT + cnt_off)
        spin(14, 4)

    def bfr(r, t):
        I(f'v_cvt_pk_bf16_f32 v{t}, v{r}, v{r}')
        I(f'v_lshlrev_b32 v{r}, 16, v{t}')

    def stats_final():
        I(f's_lshl_b32 s60, s{sR4}, 9')
        I('v_lshlrev_b32 v16, 4, v2'); I('v_add_u32 v16, s60, v16'); I(f'v_add_u32 v16, {M_STAT}, v16')
        I('ds_read_b128 v[20:23], v16')
        I('ds_read_b128 v[24:27], v16 offset:2048')
        I('v_add_f32 v18, v20, v22'); I('v_add_f32 v19, v24, v26'); I('v_add_f32 v18, v18, v19')
        I('v_add_f32 v20, v21, v23'); I('v_add_f32 v19, v25, v27'); I('v_add_f32 v20, v20, v19')
        I('v_mul_f32 v18, 0x3b000000, v18')
        I('v_mul_f32 v20, 0x3b000000, v20')
        I('v_fma_f32 v20, -v18, v18, v20')
        I('v_max_f32 v20, 0, v20')
        bfr(18, 22); bfr(20, 23)
        I('v_add_f32 v20, 0x3727c5ac, v20')
        bfr(20, 23)
        I('v_sqrt_f32 v20, v20')
        bfr(20, 23)
        I('v_rcp_f32 v6, v20')
        I('v_mul_f32 v7, v18, v6')

    def read16(base, dst):
        I('v_lshlrev_b32 v14, 4, v3'); I(f'v_add_u32 v14, {base}, v14')
        for q in range(4):
            I(f'ds_read_b128 {vr(dst+4*q,4)}, v14 offset:{q*32}')

    def features(acc, D, slot, PH):
        read_cs(slot, 16, 192)
        for r in range(16):
            I(f'v_mul_f32 v{16+r}, v7, v{16+r}')
            I(f'v_fma_f32 v{acc+r}, v{acc+r}, v6, -v{16+r}')
        for i in range(8):
            I(f'v_cvt_pk_bf16_f32 v{32+i}, v{acc+2*i}, v{acc+2*i+1}')
        I(f'v_mfma_f32_32x32x16_bf16 {vr(D,16)}, v[56:59], v[32:35], 0')
        I(f'v_mfma_f32_32x32x16_bf16 {vr(D,16)}, v[60:63], v[36:39], {vr(D,16)}')
        I(f'v_max3_f32 v40, v{D}, v{D+1}, v{D+2}'); I(f'v_min3_f32 v41, v{D}, v{D+1}, v{D+2}')
        for r in range(3, 15, 2):
            I(f'v_max3_f32 v40, v40, v{D+r}, v{D+r+1}'); I(f'v_min3_f32 v41, v41, v{D+r}, v{D+r+1}')
        I(f'v_max_f32 v40, v40, v{D+15}'); I(f'v_min_f32 v41, v41, v{D+15}')
        I(f'v_mul_f32 v40, s{sLOG}, v40'); I(f'v_mul_f32 v41, s{sLOG}, v41')
        EP, EN = 16, acc
        for r in range(16):
            I(f'v_fma_f32 v{EP+r}, v{D+r}, s{sLOG}, -v40')
            I(f'v_fma_f32 v{EN+r}, -v{D+r}, s{sLOG}, v41')
        for r in range(16):
            I(f'v_exp_f32 v{EP+r}, v{EP+r}')
            I(f'v_exp_f32 v{EN+r}, v{EN+r}')
        for base, o in ((EP, 42), (EN, 44)):
            I(f'v_add_f32 v{o}, v{base}, v{base+1}'); I(f'v_add_f32 v{o+1}, v{base+2}, v{base+3}')
            for r in range(4, 16, 2):
                I(f'v_add_f32 v{o}, v{o}, v{base+r}'); I(f'v_add_f32 v{o+1}, v{o+1}, v{base+r+1}')
            I(f'v_add_f32 v{o}, v{o}, v{o+1}')
        I('v_rcp_f32 v42, v42'); I('v_rcp_f32 v44, v44')
        for r in range(16):
            I(f'v_mul_f32 v{EP+r}, v{EP+r}, v42')
            I(f'v_mul_f32 v{EN+r}, v{EN+r}, v44')
        for i in range(8):
            I(f'v_cvt_pk_bf16_f32 v{PH+i}, v{EP+2*i}, v{EP+2*i+1}')
        for i in range(8):
            I(f'v_cvt_pk_bf16_f32 v{PH+8+i}, v{EN+2*i}, v{EN+2*i+1}')

    def h_epi(acc, i, T0=16, T1=32, O=208):
        read_cs(4 + i, T0, 128)
        read16(M_BIAS + i * 128, T1)
        for r in range(16):
            I(f'v_fma_f32 v{T0+r}, v7, v{T0+r}, -v{T1+r}')
            I(f'v_fma_f32 v{acc+r}, v{acc+r}, v6, -v{T0+r}')
            I(f'v_max_f32 v{acc+r}, 0, v{acc+r}')
            I(f'v_mul_f32 v{acc+r}, v{acc+r}, v{acc+r}')
        for k in range(8):
            I(f'v_cvt_pk_bf16_f32 v{O+k}, v{acc+2*k}, v{acc+2*k+1}')
        I(f's_mul_i32 s60, s{sRT}, {NKS}'); I(f's_lshl_b32 s61, s{sHT0}, 1'); I('s_add_u32 s60, s60, s61')
        I(f's_add_u32 s60, s60, {2*i}'); I('s_lshl_b32 s60, s60, 10')
        I(f'buffer_store_dwordx4 {vr(O,4)}, v4, s[{SW}:{SW+3}], s60 offen{SC}')
        I(f'buffer_store_dwordx4 {vr(O+4,4)}, v4, s[{SW}:{SW+3}], s60 offen offset:1024{SC}')

    def done_flag(cnt_off, n, flag_base, lab, tag=None, va=14):
        if tag is None: I('s_waitcnt vmcnt(0)')
        else: g.wait_vm(tag)
        I(f'v_mov_b32 v{va}, {M_CNT+cnt_off}'); I(f'v_mov_b32 v{va+1}, 1')
        I('s_mov_b64 exec, 1')
        I(f'ds_add_rtn_u32 v{va+1}, v{va}, v{va+1}')
        I('s_waitcnt lgkmcnt(0)')
        I('s_mov_b64 exec, -1')
        I(f'v_readfirstlane_b32 s61, v{va+1}')
        I(f's_cmp_lg_u32 s61, {n-1}')
        I(f's_cbranch_scc1 {lab}')
        sv3 = (list(g.vq), list(g.lq), g.vm_issued)
        I(f's_lshl_b32 s61, s{sRB}, 7'); I(f's_lshl_b32 s60, s{sCG}, 2'); I('s_add_u32 s61, s61, s60'); I(f's_add_u32 s61, s61, {FLAG_OFF+flag_base}')
        I(f'v_mov_b32 v{va}, s61'); I(f'v_mov_b32 v{va+1}, 1')
        I('s_mov_b64 exec, 1')
        I(f'buffer_store_dword v{va+1}, v{va}, s[{SW}:{SW+3}], 0 offen sc1')
        I('s_mov_b64 exec, -1')
        g.label(lab, nop=False)
        g.vq, g.lq, g.vm_issued = list(sv3[0]), list(sv3[1]), sv3[2]

    tags = {}
    realI = g.I
    def I(text):
        if text.startswith('__tag__'):
            tags[int(text[7:])] = g.vm_tag(); return
        if text == '__side__':
            side_store(128, 132, 73); side_store(136, 140, 99); side_store(144, 148, 72); wphi_build()
            return
        if text == '__count__':
            realI(f'v_mov_b32 v14, {M_CNT+48}'); realI('v_mov_b32 v15, 1')
            realI('s_mov_b64 exec, 1')
            realI('ds_add_rtn_u32 v15, v14, v15')
            realI('s_waitcnt lgkmcnt(0)')
            realI('s_mov_b64 exec, -1')
            realI('v_readfirstlane_b32 s61, v15')
            realI('s_cmp_lg_u32 s61, 3')
            realI('s_cbranch_scc1 k1_nocount')
            sv2 = (list(g.vq), list(g.lq), g.vm_issued)
            realI(f's_lshl_b32 s61, s{sCG}, 4'); realI('v_mov_b32 v14, s61'); realI('v_mov_b32 v15, 1')
            realI('s_mov_b64 exec, 1')
            realI(f'buffer_atomic_add v15, v14, s[{SD}:{SD+3}], 0 offen sc1')
            realI('s_mov_b64 exec, -1')
            g.label('k1_nocount', nop=False)
            g.vq, g.lq, g.vm_issued = list(sv2[0]), list(sv2[1]), sv2[2]
            return
        if text == '__sideB__':
            wphi_build(); return
        realI(text)
    for j in range(2):
        for grp in dma_stage(j, 'A'):
            for l in grp: I(l)
    late_setup()
    for q in range(4): I(f'v_mov_b32 v{16+q}, 0')
    I(f'v_add_u32 v14, {M_Z0}, v4')
    I('ds_write_b128 v14, v[16:19] offset:1024')
    I(f's_cmp_lg_u32 s{sR4}, 0')
    I('s_cbranch_scc1 k1_noreset')
    svr = (list(g.vq), list(g.lq), g.vm_issued)
    I(f's_lshl_b32 s60, s{sCG}, 7'); I(f's_lshl_b32 s61, s{sRB}, 2'); I('s_add_u32 s60, s60, s61'); I(f's_add_u32 s60, s60, {FLAG_OFF}')
    I(f's_lshl_b32 s61, s{sRB}, 7'); I(f's_lshl_b32 s62, s{sCG}, 2'); I('s_add_u32 s61, s61, s62'); I(f's_add_u32 s61, s61, {FLAG_OFF}')
    I('v_lshlrev_b32 v14, 12, v1'); I('v_add_u32 v14, s61, v14'); I('v_mov_b32 v15, s60')
    I('v_cmp_eq_u32 vcc, 0, v1'); I('v_cndmask_b32 v14, v14, v15, vcc'); I('v_mov_b32 v15, 0')
    I('s_mov_b64 exec, 7')
    I(f'buffer_store_dword v15, v14, s[{SW}:{SW+3}], 0 offen sc1')
    I('s_mov_b64 exec, -1')
    g.label('k1_noreset', nop=False)
    g.vq, g.lq, g.vm_issued = list(svr[0]), list(svr[1]), svr[2]
    wphi_load()
    I(f's_lshl_b32 s72, s{sR4}, 1')
    side_job('s72', 128, 132, 152, 73)
    I('s_add_u32 s72, s72, 1')
    side_job('s72', 136, 140, 152, 99)
    side_job('8', 144, 148, 152, 72)
    def hookA(s):
        return [['__side__']] if s == 3 else [['__count__']] if s == 6 else []
    phase0('A', hookA)
    cs_add([160], 0)
    cs_add([164, 168], 4)
    I('s_waitcnt lgkmcnt(0)')
    I('s_barrier')
    mark(); mark(1); mark(3)
    stats_final()
    features(64, 112, 0, 32)
    mark(1)
    I('v_and_b32 v16, 15, v2'); I('v_lshrrev_b32 v17, 4, v2'); I('v_xor_b32 v17, v17, v3'); I('v_lshlrev_b32 v17, 6, v17')
    I('v_add_u32 v16, v16, v17')
    I('v_mov_b32 v18, 0x3f80'); I('v_mov_b32 v19, 0x3f800000')
    for mq in range(8):
        I(f'v_cmp_eq_u32 vcc, {2*mq}, v16')
        I(f'v_cndmask_b32 v{48+mq}, 0, v18, vcc')
        I(f'v_cmp_eq_u32 vcc, {2*mq+1}, v16')
        I(f'v_cndmask_b32 v{48+mq}, v{48+mq}, v19, vcc')
    DT = (112, 176)
    for tl in range(2):
        D = DT[tl]
        I(f'v_mfma_f32_32x32x16_bf16 {vr(D,16)}, {vr(32+8*tl,4)}, v[48:51], 0')
        I(f'v_mfma_f32_32x32x16_bf16 {vr(D,16)}, {vr(36+8*tl,4)}, v[52:55], {vr(D,16)}')
    I(f's_lshl_b32 s60, s{sR4}, 2'); I(f's_add_u32 s60, s60, {M_CNT+16}'); I('v_mov_b32 v14, s60')
    spin(14, 1)
    I(f's_lshl_b32 s60, s{sR4}, 11'); I(f's_add_u32 s60, s60, {M_VX}'); I('v_add_u32 v12, s60, v4')
    I('ds_read_b128 v[48:51], v12'); I('ds_read_b128 v[52:55], v12 offset:1024')
    for tl in range(2):
        D = DT[tl]
        I(f'v_add_f32 v{8+tl}, v{D}, v{D+1}'); I(f'v_add_f32 v{10+tl}, v{D+2}, v{D+3}')
        for r in range(4, 16, 2):
            I(f'v_add_f32 v{8+tl}, v{8+tl}, v{D+r}'); I(f'v_add_f32 v{10+tl}, v{10+tl}, v{D+r+1}')
        I(f'v_add_f32 v{8+tl}, v{8+tl}, v{10+tl}')
        for i in range(8):
            I(f'v_cvt_pk_bf16_f32 v{16+8*tl+i}, v{D+2*i}, v{D+2*i+1}')
    for tl, T in ((0, 32), (1, 192)):
        I(f'v_mfma_f32_32x32x16_bf16 {vr(T,16)}, {vr(16+8*tl,4)}, v[48:51], 0')
        I(f'v_mfma_f32_32x32x16_bf16 {vr(T,16)}, {vr(20+8*tl,4)}, v[52:55], {vr(T,16)}')
    I('v_and_b32 v10, 16, v1'); I('v_cmp_ne_u32 vcc, 0, v10')
    for tl, T in ((0, 32), (1, 192)):
        for j in range(8):
            I(f'v_cndmask_b32 v{64+8*tl+j}, v{T+j}, v{T+8+j}, vcc')
    I(f's_lshl_b32 s60, s{sR4}, 12'); I(f's_add_u32 s60, s60, {M_KVX}')
    I('v_add_u32 v14, s60, v4')
    for q in range(4):
        I(f'ds_write_b128 v14, {vr(64+4*q,4)} offset:{q*1024}')
    I(f's_lshl_b32 s60, s{sR4}, 11'); I(f's_add_u32 s60, s60, {M_ZX}')
    I('v_lshlrev_b32 v11, 3, v1'); I('v_add_u32 v14, s60, v11')
    I('ds_write_b64 v14, v[8:9]')
    I('s_waitcnt lgkmcnt(0)')
    I(f'v_mov_b32 v14, {M_CNT}'); I('v_mov_b32 v10, 1')
    I('s_mov_b64 exec, 1')
    I('ds_add_rtn_u32 v10, v14, v10')
    I('s_waitcnt lgkmcnt(0)')
    I('s_mov_b64 exec, -1')
    I(f'v_readfirstlane_b32 s{sPUB}, v10')
    I(f's_cmp_lg_u32 s{sPUB}, 3')
    I('s_cbranch_scc1 k1_nopub')
    sv = (list(g.vq), list(g.lq), g.vm_issued)
    I(f'v_add_u32 v14, {M_KVX}, v4')
    PB = (16, 32, 64, 192)
    for w in range(4):
        for q in range(4):
            I(f'ds_read_b128 {vr(PB[w]+4*q,4)}, v14 offset:{w*4096+q*1024}')
    I(f'v_add_u32 v14, {M_ZX}, v11')
    for w in range(4):
        I(f'ds_read_b64 {vr(48+2*w,2)}, v14 offset:{w*2048}')
    for r in range(16):
        I(f'v_add_f32 v{16+r}, v{16+r}, v{32+r}')
        I(f'v_add_f32 v{192+r}, v{192+r}, v{64+r}')
        I(f'v_add_f32 v{16+r}, v{16+r}, v{192+r}')
    for e in range(2):
        I(f'v_add_f32 v{48+e}, v{48+e}, v{50+e}'); I(f'v_add_f32 v{52+e}, v{52+e}, v{54+e}'); I(f'v_add_f32 v{48+e}, v{48+e}, v{52+e}')
    I(f's_lshl_b32 s60, s{sCG}, 4'); I(f's_add_u32 s60, s60, s{sRB}')
    I('s_lshl_b32 s61, s60, 12'); I(f's_add_u32 s61, s61, {KVP_OFF}')
    for q in range(4):
        I(f'buffer_store_dwordx4 {vr(16+4*q,4)}, v4, s[{SW}:{SW+3}], s61 offen offset:{q*1024} sc1')
    I('v_permlane32_swap_b32 v48, v49')
    I('v_add_f32 v48, v48, v49')
    I('s_lshl_b32 s61, s60, 8'); I(f's_add_u32 s61, s61, {ZP_OFF}')
    I('v_lshlrev_b32 v14, 2, v1')
    I(f'buffer_store_dword v48, v14, s[{SW}:{SW+3}], s61 offen sc1')
    I('s_waitcnt vmcnt(0)')
    I(f's_lshl_b32 s60, s{sCG}, 7'); I(f's_lshl_b32 s61, s{sRB}, 2'); I('s_add_u32 s60, s60, s61'); I(f's_add_u32 s60, s60, {FLAG_OFF}')
    I('v_mov_b32 v14, s60'); I('v_mov_b32 v15, 1')
    I('s_mov_b64 exec, 1')
    I(f'buffer_store_dword v15, v14, s[{SW}:{SW+3}], 0 offen sc1')
    I('s_mov_b64 exec, -1')
    g.label('k1_nopub')
    g.vq, g.lq, g.vm_issued = list(sv[0]), list(sv[1]), sv[2]
    mark(1)
    h_epi(80, 0)
    h_epi(96, 1, O=216)
    mark(1)
    if fused:
        done_flag(44, 8, 0x1000, 'k1_hdA')
        part2_pre(I, g, 'A')
        part2_main(I, g, stamp, marks_out, mark, 'A', lambda s_: None)
    else:
        marks_out()
        if stamp: stamp_end(I, sWAVE, SW, STAMP_OFF)
        I('s_endpgm')

    g.label('k1_pathB')
    g.vq, g.lq, g.vm_issued = list(saved[0]), list(saved[1]), saved[2]
    tags.clear()
    mk[0] = 0
    for j in range(2):
        for grp in dma_stage(j, 'B'):
            for l in grp: I(l)
    late_setup()
    wphi_load()
    I('v_lshlrev_b32 v16, 2, v1'); I(f's_lshl_b32 s60, s{sHT0}, 6')
    I(f'buffer_load_dword v144, v16, s[{SB1}:{SB1+3}], s60 offen')
    def hookB(s):
        if s == 3:
            return [['__sideB__', 'v_lshlrev_b32 v146, 16, v144', f'v_and_b32 v147, s{sMASK}, v144',
                     'v_lshlrev_b32 v145, 3, v1', f'v_add_u32 v145, {M_BIAS}, v145', 'ds_write_b64 v145, v[146:147]']]
        return []
    phase0('B', hookB)
    cs_add([160, 164], 1)
    cs_add([168, 172], 6)
    I('s_waitcnt lgkmcnt(0)')
    I('s_barrier')
    mark(); mark(1); mark(3)
    stats_final()
    I(f's_lshl_b32 s60, s{sR4}, 8'); I(f's_add_u32 s60, s60, {M_RST}')
    I('v_lshlrev_b32 v16, 2, v2'); I('v_add_u32 v16, s60, v16')
    I('ds_write_b32 v16, v6'); I('ds_write_b32 v16, v7 offset:128')
    I('v_lshlrev_b32 v14, 4, v3'); I('v_add_u32 v14, s60, v14')
    for q in range(4):
        I(f'ds_read_b128 {vr(16+4*q,4)}, v14 offset:{128+q*32}')
    I('v_lshlrev_b32 v15, 2, v2'); I(f'v_add_u32 v15, {M_CS+512}, v15')
    for w in range(4): I(f'ds_read_b32 v{8+w}, v15 offset:{w*128}')
    I('v_add_f32 v8, v8, v9'); I('v_add_f32 v10, v10, v11'); I('v_add_f32 v10, v10, v8')
    for q in range(4):
        I(f'ds_read_b128 {vr(32+4*q,4)}, v14 offset:{q*32}')
    for r in range(16):
        I(f'v_mul_f32 v{16+r}, v{16+r}, v10')
        I(f'v_fma_f32 v{64+r}, v{64+r}, v{32+r}, -v{16+r}')
    for i in range(8):
        I(f'v_cvt_pk_bf16_f32 v{48+i}, v{64+2*i}, v{64+2*i+1}')
    I(f's_lshl_b32 s60, s{sR4}, 11'); I(f's_add_u32 s60, s60, {M_VX}'); I('v_add_u32 v12, s60, v4')
    I('ds_write_b128 v12, v[48:51]'); I('ds_write_b128 v12, v[52:55] offset:1024')
    I('s_waitcnt lgkmcnt(0)')
    I(f's_lshl_b32 s60, s{sR4}, 2'); I(f's_add_u32 s60, s60, {M_CNT+16}'); I('v_mov_b32 v14, s60'); I('v_mov_b32 v15, 1')
    I('ds_write_b32 v14, v15')
    mark(1)
    I(f's_and_b32 s60, s{sCG}, 3'); I('s_cmp_eq_u32 s60, 3'); I('s_cbranch_scc1 k1_b_nopair')
    sv = (list(g.vq), list(g.lq), g.vm_issued)
    h_epi(96, 2)
    h_epi(112, 3, O=216)
    g.label('k1_b_nopair')
    g.vq, g.lq, g.vm_issued = list(sv[0]), list(sv[1]), sv[2]
    mark(1)
    features(80, 64, 2, 48)
    mark(1)
    KV0, Z0 = 192, 30
    otag = [None]
    def o_loads():
        I(f's_lshl_b32 s60, s{sCG}, 16'); I(f's_lshl_b32 s61, s{sR4}, 10'); I('s_add_u32 s60, s60, s61'); I(f's_add_u32 s60, s60, {KVP_OFF}')
        I(f's_lshl_b32 s61, s{sCG}, 12'); I(f's_add_u32 s61, s61, {ZP_OFF}')
        for i in range(4):
            I(f'buffer_load_dwordx4 {vr(Z0+4*i,4)}, v4, s[{SW}:{SW+3}], s61 offen offset:{i*1024} sc1')
        for rbp in range(16):
            I(f'buffer_load_dwordx4 {vr(KV0+4*rbp,4)}, v4, s[{SW}:{SW+3}], s60 offen sc1')
            I('s_add_u32 s60, s60, 4096')
    def o_reduce():
        for e in range(4):
            I(f'v_add_f32 v{Z0+e}, v{Z0+e}, v{Z0+4+e}'); I(f'v_add_f32 v{Z0+8+e}, v{Z0+8+e}, v{Z0+12+e}'); I(f'v_add_f32 v{Z0+e}, v{Z0+e}, v{Z0+8+e}')
        for sw in ('v_permlane32_swap_b32', 'v_permlane16_swap_b32'):
            for e in range(4): I(f'v_mov_b32 v{Z0+4+e}, v{Z0+e}')
            for e in range(4):
                I(f'{sw} v{Z0+e}, v{Z0+4+e}')
                I(f'v_add_f32 v{Z0+e}, v{Z0+e}, v{Z0+4+e}')
        I(f'v_cvt_pk_bf16_f32 v{Z0+6}, v{Z0}, v{Z0+1}'); I(f'v_cvt_pk_bf16_f32 v{Z0+7}, v{Z0+2}, v{Z0+3}')
        T0, T1, T2 = Z0 + 8, Z0 + 9, Z0 + 10
        I(f'v_and_b32 v{T0}, 15, v1')
        I(f'v_lshrrev_b32 v{T1}, 3, v{T0}'); I(f'v_lshlrev_b32 v{T1}, 5, v{T1}')
        I(f'v_lshrrev_b32 v{T2}, 2, v{T0}'); I(f'v_and_b32 v{T2}, 1, v{T2}'); I(f'v_lshlrev_b32 v{T2}, 6, v{T2}'); I(f'v_add_u32 v{T1}, v{T1}, v{T2}')
        I(f'v_and_b32 v{T2}, 3, v{T0}'); I(f'v_lshlrev_b32 v{T2}, 3, v{T2}'); I(f'v_add_u32 v{T1}, v{T1}, v{T2}')
        I(f's_lshl_b32 s60, s{sR4}, 7'); I(f's_add_u32 s60, s60, {M_ZL}'); I(f'v_add_u32 v{T1}, s60, v{T1}')
        I(f'ds_write_b64 v{T1}, {vr(Z0+6,2)}')
        for st in (8, 4, 2, 1):
            for i in range(st):
                for e in range(0, 4, 2): I(f'v_pk_add_f32 {vr(KV0+4*i+e,2)}, {vr(KV0+4*i+e,2)}, {vr(KV0+4*(i+st)+e,2)}')
        I(f'v_cvt_pk_bf16_f32 v{KV0+8}, v{KV0}, v{KV0+1}'); I(f'v_cvt_pk_bf16_f32 v{KV0+9}, v{KV0+2}, v{KV0+3}')
        I(f's_lshl_b32 s60, s{sR4}, 4'); I(f's_add_u32 s60, s60, {M_KVL}')
        I(f'v_lshlrev_b32 v{T1}, 6, v2'); I(f'v_lshlrev_b32 v{T0}, 3, v3'); I(f'v_add_u32 v{T1}, v{T1}, v{T0}'); I(f'v_add_u32 v{T1}, s60, v{T1}')
        I(f'ds_write_b64 v{T1}, {vr(KV0+8,2)}')
    def o_final():
        a0, a1, a2, a3 = Z0, Z0 + 1, Z0 + 2, Z0 + 3
        I(f'v_lshrrev_b32 v{a0}, 2, v2'); I(f'v_and_b32 v{a0}, 1, v{a0}')
        I(f'v_lshrrev_b32 v{a1}, 3, v2'); I(f'v_lshlrev_b32 v{a1}, 2, v{a1}'); I(f'v_and_b32 v{a2}, 3, v2'); I(f'v_add_u32 v{a1}, v{a1}, v{a2}')
        I(f'v_lshlrev_b32 v{a2}, 4, v{a0}'); I(f'v_add_u32 v{a1}, v{a1}, v{a2}'); I(f'v_lshlrev_b32 v{a1}, 6, v{a1}'); I(f'v_add_u32 v{a1}, {M_KVL}, v{a1}')
        I(f's_lshl_b32 s60, s{sR4}, 7'); I(f's_add_u32 s60, s60, {M_ZL}')
        I(f'v_lshlrev_b32 v{a2}, 6, v3'); I(f'v_add_u32 v{a2}, s60, v{a2}')
        I(f'v_mov_b32 v{a3}, {M_ZERO}')
        I(f'v_cmp_eq_u32 vcc, v{a0}, v3')
        I(f'v_cndmask_b32 v{a1}, v{a3}, v{a1}, vcc'); I(f'v_cndmask_b32 v{a2}, v{a3}, v{a2}, vcc')
        for m in range(4):
            I(f'ds_read_b128 {vr(192+4*m,4)}, v{a1} offset:{m*16}')
            I(f'ds_read_b128 {vr(208+4*m,4)}, v{a2} offset:{m*16}')
        for m in range(4):
            I(f'v_mfma_f32_32x32x16_bf16 v[224:239], {vr(192+4*m,4)}, {vr(48+4*m,4)}, {"0" if m==0 else "v[224:239]"}')
            I(f'v_mfma_f32_32x32x16_bf16 v[240:255], {vr(208+4*m,4)}, {vr(48+4*m,4)}, {"0" if m==0 else "v[240:255]"}')
        I(f'v_add_f32 v{a0}, 0x358637bd, v240')
        I(f'v_rcp_f32 v{a0}, v{a0}')
        for r in range(16): I(f'v_mul_f32 v{224+r}, v{224+r}, v{a0}')
        for i in range(8): I(f'v_cvt_pk_bf16_f32 v{Z0+4+i}, v{224+2*i}, v{224+2*i+1}')
        I(f's_mul_i32 s60, s{sRT}, {NKS}'); I(f's_lshl_b32 s61, s{sCG}, 1'); I('s_add_u32 s60, s60, s61'); I('s_add_u32 s60, s60, 112')
        I('s_lshl_b32 s60, s60, 10')
        I(f'buffer_store_dwordx4 {vr(Z0+4,4)}, v4, s[{SW}:{SW+3}], s60 offen sc1')
        I(f'buffer_store_dwordx4 {vr(Z0+8,4)}, v4, s[{SW}:{SW+3}], s60 offen offset:1024 sc1')
        otag[0] = g.vm_tag()
    done_flag(44, 8, 0x1000, 'k1_hdB')
    I(f's_cmp_lg_u32 s{sR4}, 0')
    I('s_cbranch_scc1 k1_waitflag')
    I('v_and_b32 v14, 15, v1'); I('v_lshlrev_b32 v14, 2, v14')
    I(f's_lshl_b32 s62, s{sCG}, 7'); I(f's_add_u32 s62, s62, {FLAG_OFF}')
    I(f's_lshl_b32 s60, s{sCG}, 4'); I('v_mov_b32 v12, s60')
    I('s_mov_b32 s61, 0')
    g.label('k1_poll', nop=False)
    I(f'buffer_load_dword v11, v12, s[{SD}:{SD+3}], 0 offen sc1')
    I('s_waitcnt vmcnt(0)')
    I(f'buffer_load_dword v10, v14, s[{SW}:{SW+3}], s62 offen sc1')
    I('v_cmp_gt_u32 s[64:65], 16, v11')
    I('s_waitcnt vmcnt(0)')
    I('v_cmp_ne_u32 vcc, 1, v10')
    I('s_add_u32 s61, s61, 1')
    I('s_or_b64 vcc, vcc, s[64:65]')
    I('s_cmp_eq_u64 vcc, 0')
    I('s_cbranch_scc1 k1_pollok')
    g.label('k1_poll2', nop=False)
    I('s_cmp_ge_u32 s61, 0x400000')
    I('s_cbranch_scc1 k1_pollok')
    I('s_cmp_lg_u64 s[64:65], 0')
    I('s_cbranch_scc1 k1_poll')
    I(f'buffer_load_dword v10, v14, s[{SW}:{SW+3}], s62 offen sc1')
    I('s_waitcnt vmcnt(0)')
    I('v_cmp_ne_u32 vcc, 1, v10')
    I('s_add_u32 s61, s61, 1')
    I('s_cmp_eq_u64 vcc, 0')
    I('s_cbranch_scc1 k1_pollok')
    I('s_cmp_lt_u32 s61, 0x400000')
    I('s_cbranch_scc1 k1_poll2')
    g.label('k1_pollok', nop=False)
    I(f'v_mov_b32 v14, {M_CNT+40}'); I('v_mov_b32 v15, 1')
    I('ds_write_b32 v14, v15')
    I('s_branch k1_polled')
    g.label('k1_waitflag', nop=False)
    I(f'v_mov_b32 v14, {M_CNT+40}')
    spin(14, 1)
    g.label('k1_polled', nop=False)
    g.forget_pending()
    mark(1)
    o_loads()
    o_reduce()
    mark(1)
    sync4(4)
    o_final()
    mark(1)
    def hookP2(s_):
        if s_ == 1: done_flag(52, 4, 0x2000, 'k1_od', tag=otag[0], va=Z0)
    part2_pre(I, g, 'B')
    part2_main(I, g, stamp, marks_out, mark, 'B', hookP2)
    g.raw('k1_end:')
    I('s_endpgm')

K1_DESC = """
.amdhsa_kernel k1_kernel
  .amdhsa_next_free_vgpr 256
  .amdhsa_next_free_sgpr 100
  .amdhsa_accum_offset 256
  .amdhsa_group_segment_fixed_size 0
  .amdhsa_kernarg_size 96
  .amdhsa_user_sgpr_count 2
  .amdhsa_user_sgpr_kernarg_segment_ptr 1
  .amdhsa_system_sgpr_workgroup_id_x 1
  .amdhsa_float_denorm_mode_32 3
.end_amdhsa_kernel
"""
```

```python
from asmgen import *

HF_OFF = 0
WF_OFF = 0xA00000
KVP_OFF = 0xD00000
ZP_OFF = 0xE00000
FLAG_OFF = 0xE80000
WS_SIZE = 0xF00000
STAMP_OFF = 0xF00000
NKS = 144
LOG2E = 0x3fb8aa3b
K2_LDS = 163840

def stamp_begin(I):
    I('s_memrealtime s[90:91]'); I('s_memtime s[92:93]')

def stamp_end(I, wave_sreg, srd, off, vt=8):
    I('s_waitcnt vmcnt(0)')
    I('s_memrealtime s[94:95]'); I('s_memtime s[96:97]')
    I('s_waitcnt lgkmcnt(0)')
    I('s_sub_u32 s96, s96, s92')
    I(f'v_mov_b32 v{vt}, s90'); I(f'v_mov_b32 v{vt+1}, s94'); I(f'v_mov_b32 v{vt+2}, s96'); I('s_sub_u32 s88, s88, s92'); I(f'v_mov_b32 v{vt+3}, s88')
    I('s_lshl_b32 s98, s2, 3'); I(f's_add_u32 s98, s98, s{wave_sreg}'); I('s_lshl_b32 s98, s98, 4')
    I('s_add_u32 s98, s98, 0x%x' % off)
    I(f'v_mov_b32 v{vt+4}, s98')
    I(f's_mov_b32 s{srd+2}, 0x1000000')
    I(f'buffer_store_dwordx4 v[{vt}:{vt+3}], v{vt+4}, s[{srd}:{srd+3}], 0 offen')

def gen_k2(g, NS=9, stamp=False, mode=0, ks=4):
    I = g.I
    g.raw('.p2align 8')
    g.raw('k2_kernel:')
    g.reset_state()
    I('s_cmp_ge_u32 s2, 256')
    I('s_cbranch_scc1 k2_end')
    if stamp: stamp_begin(I)
    I('s_load_dwordx2 s[8:9], s[0:1], 0')
    I('s_load_dwordx4 s[36:39], s[0:1], 64')
    I('s_load_dwordx2 s[20:21], s[0:1], 88')
    I('v_lshrrev_b32 v2, 6, v0')
    I('v_and_b32 v3, 63, v0')
    I('v_readfirstlane_b32 s24, v2')
    I('v_lshlrev_b32 v1, 4, v3')
    I('s_and_b32 s25, s2, 7')
    I('s_lshl_b32 s25, s25, 2')
    I('s_lshr_b32 s26, s2, 6')
    I('s_add_u32 s25, s25, s26')
    I('s_lshr_b32 s26, s2, 3')
    I('s_and_b32 s26, s26, 7')
    if mode == 1:
        I('s_mov_b32 s25, 0'); I('s_mov_b32 s26, 0')
    if mode == 2:
        I('s_mov_b32 s26, 0')
    if mode == 3:
        I('s_mov_b32 s25, 0')
    I('s_lshl_b32 s25, s25, 1')
    I('s_lshl_b32 s26, s26, 1')
    I('s_lshr_b32 s27, s24, 1')
    I('s_and_b32 s28, s27, 1')
    I('s_add_u32 s29, s25, s28')
    I('s_add_u32 s30, s26, s28')
    I('s_cmp_ge_u32 s27, 2')
    I('s_cselect_b32 s29, s30, s29')
    I('s_cselect_b32 s31, 0x%x, %d' % (WF_OFF, HF_OFF))
    I(f's_mul_i32 s40, s29, {NKS*1024}')
    I('s_add_u32 s40, s40, s31')
    I('s_and_b32 s31, s24, 1')
    I(f's_mul_i32 s31, s31, {ks*512}')
    I('s_add_u32 s40, s40, s31')
    I(f's_mul_i32 s41, s24, {ks*512}')
    I('s_and_b32 s42, s24, 3')
    I('s_lshr_b32 s43, s42, 1')
    I('s_and_b32 s44, s42, 1')
    I('s_lshr_b32 s45, s24, 2')
    I('s_waitcnt lgkmcnt(0)')
    I('s_mov_b32 s22, %d' % WS_SIZE)
    I('s_mov_b32 s23, 0x20000')
    I('s_mov_b32 s10, 0x200000')
    I('s_mov_b32 s11, 0x20000')
    I('s_mov_b32 s12, s36'); I('s_mov_b32 s13, s37'); I('s_mov_b32 s14, 1024'); I('s_mov_b32 s15, 0x20000')
    I('s_mov_b32 s16, s38'); I('s_mov_b32 s17, s39'); I('s_mov_b32 s18, 0x200000'); I('s_mov_b32 s19, 0x20000')
    KS = ks
    NST = NKS // KS
    SB = KS * 4096
    ND = KS // 2
    def issue(s):
        slot = s % NS
        I(f's_add_u32 m0, s41, {slot*SB}')
        for d in range(ND):
            I(f'buffer_load_dwordx4 v1, s[20:23], s40 offen offset:{d*1024} lds')
        I(f's_add_u32 s40, s40, {KS*1024}')
    I('v_and_b32 v4, 31, v3')
    I('v_lshrrev_b32 v5, 5, v3')
    I('s_add_u32 s35, s25, s43')
    I('s_lshl_b32 s35, s35, 5')
    I('v_add_u32 v4, s35, v4')
    I('v_lshlrev_b32 v4, 10, v4')
    I('v_lshlrev_b32 v5, 5, v5')
    I('s_add_u32 s35, s26, s44')
    I('s_lshl_b32 s35, s35, 6')
    I('s_lshl_b32 s34, s45, 4')
    I('s_add_u32 s35, s35, s34')
    I('v_add_u32 v5, s35, v5')
    I('v_add_u32 v4, v4, v5')
    I('buffer_load_dwordx4 v[8:11], v4, s[8:11], 0 offen')
    I('buffer_load_dwordx4 v[12:15], v5, s[12:15], 0 offen')
    for s in range(NS - 1): issue(s)
    I(f's_mul_i32 s35, s43, {KS*1024}')
    I(f's_mul_i32 s34, s45, {ND*1024}')
    I('s_add_u32 s35, s35, s34')
    I('v_add_u32 v16, s35, v1')
    I(f's_mul_i32 s35, s44, {KS*1024}')
    I('s_add_u32 s35, s35, s34')
    I(f's_add_u32 s35, s35, {2*KS*1024}')
    I('v_add_u32 v19, s35, v1')
    GRP = 65536 // SB
    for a in (1, 2):
        I(f'v_add_u32 v{16+a}, {a*GRP*SB}, v16')
        I(f'v_add_u32 v{19+a}, {a*GRP*SB}, v19')
    I('s_xor_b32 s35, s24, 4')
    I('s_lshl_b32 s35, s35, 12')
    I('v_add_u32 v22, s35, v1')
    I('s_lshl_b32 s35, s24, 12')
    I('v_add_u32 v23, s35, v1')
    FB = 128
    def fr(buf, kk, hw): return FB + buf * ND * 8 + kk * 8 + hw * 4
    A1, A2 = 64, 80
    NH = 112 // KS
    def mfmas(s):
        acc = A1 if s < NH else A2
        for kk in range(ND):
            c = '0' if (s in (0, NH) and kk == 0) else vr(acc, 16)
            if mode in (11, 12) and 1 < s < NST - 2: continue
            I(f'v_mfma_f32_32x32x16_bf16 {vr(acc,16)}, {vr(fr(s&1,kk,1),4)}, {vr(fr(s&1,kk,0),4)}, {c}')
    for s in range(NST):
        younger = min(NS - 1, NST - s) - 1
        I(f's_waitcnt vmcnt({ND*younger}) lgkmcnt(0)')
        I('s_barrier')
        if stamp and s == 0: I('s_memtime s[86:87]')
        slot = s % NS
        a, b = slot // GRP, slot % GRP
        for kk in range(ND):
            if mode in (12, 13) and 1 < s < NST - 2: continue
            I(f'ds_read_b128 {vr(fr(s&1,kk,0),4)}, v{16+a} offset:{b*SB+kk*1024}')
            I(f'ds_read_b128 {vr(fr(s&1,kk,1),4)}, v{19+a} offset:{b*SB+kk*1024}')
        if s + NS - 1 < NST: issue(s + NS - 1)
        if s > 0: mfmas(s - 1)
    mfmas(NST - 1)
    if stamp: I('s_memtime s[88:89]')
    I('s_barrier')
    I('s_mov_b32 s35, 0xffff0000')
    I('s_mov_b32 s34, 0x%x' % (LOG2E | 0x80000000))
    I('s_cmp_eq_u32 s45, 1')
    I('s_cbranch_scc1 k2_kg1')
    saved = (list(g.vq), list(g.lq))
    for kg in range(2):
        if kg == 1:
            g.label('k2_kg1')
            g.vq, g.lq = list(saved[0]), list(saved[1])
        keep, give = 8 * kg, 8 * (1 - kg)
        for a, acc in enumerate((A1, A2)):
            for q in range(2):
                I(f'ds_write_b128 v22, {vr(acc+give+4*q,4)} offset:{(a*2+q)*1024}')
        I('s_waitcnt lgkmcnt(0)')
        I('s_barrier')
        T = 96
        for a in range(2):
            for q in range(2):
                I(f'ds_read_b128 {vr(T+a*8+4*q,4)}, v23 offset:{(a*2+q)*1024}')
        for r in range(8):
            I(f'v_add_f32 v{A1+keep+r}, v{A1+keep+r}, v{T+r}')
        for r in range(8):
            I(f'v_add_f32 v{A2+keep+r}, v{A2+keep+r}, v{T+8+r}')
        U = 112
        def rnd(a, b, tmp):
            I(f'v_cvt_pk_bf16_f32 v{tmp}, v{a}, v{b}')
            I(f'v_lshlrev_b32 v{a}, 16, v{tmp}')
            I(f'v_and_b32 v{b}, s35, v{tmp}')
        P = [(A1 + keep + 2 * i, A1 + keep + 2 * i + 1, A2 + keep + 2 * i, A2 + keep + 2 * i + 1,
              U + 4 * i, U + 4 * i + 1, U + 4 * i + 2, U + 4 * i + 3, i) for i in range(4)]
        for (a, b, c, d, t0, t1, t2, t3, i) in P: rnd(a, b, t0)
        for (a, b, c, d, t0, t1, t2, t3, i) in P:
            I(f'v_lshlrev_b32 v{t1}, 16, v{12+i}')
            I(f'v_and_b32 v{t2}, s35, v{12+i}')
            I(f'v_add_f32 v{a}, v{a}, v{t1}')
            I(f'v_add_f32 v{b}, v{b}, v{t2}')
        for (a, b, c, d, t0, t1, t2, t3, i) in P: rnd(a, b, t0)
        for (a, b, c, d, t0, t1, t2, t3, i) in P:
            I(f'v_mul_f32 v{t1}, s34, v{a}')
            I(f'v_mul_f32 v{t2}, s34, v{b}')
            I(f'v_exp_f32 v{t1}, v{t1}')
            I(f'v_exp_f32 v{t2}, v{t2}')
        for (a, b, c, d, t0, t1, t2, t3, i) in P:
            I(f'v_add_f32 v{t1}, 1.0, v{t1}')
            I(f'v_add_f32 v{t2}, 1.0, v{t2}')
            I(f'v_rcp_f32 v{t1}, v{t1}')
            I(f'v_rcp_f32 v{t2}, v{t2}')
        for (a, b, c, d, t0, t1, t2, t3, i) in P:
            I(f'v_mul_f32 v{a}, v{a}, v{t1}')
            I(f'v_mul_f32 v{b}, v{b}, v{t2}')
            rnd(c, d, t3)
        for (a, b, c, d, t0, t1, t2, t3, i) in P: rnd(a, b, t0)
        for (a, b, c, d, t0, t1, t2, t3, i) in P:
            I(f'v_mul_f32 v{a}, v{a}, v{c}')
            I(f'v_mul_f32 v{b}, v{b}, v{d}')
        for (a, b, c, d, t0, t1, t2, t3, i) in P: rnd(a, b, t0)
        for (a, b, c, d, t0, t1, t2, t3, i) in P:
            I(f'v_lshlrev_b32 v{t1}, 16, v{8+i}')
            I(f'v_and_b32 v{t2}, s35, v{8+i}')
            I(f'v_add_f32 v{a}, v{a}, v{t1}')
            I(f'v_add_f32 v{b}, v{b}, v{t2}')
            I(f'v_cvt_pk_bf16_f32 v{24+i}, v{a}, v{b}')
        I('buffer_store_dwordx4 v[24:27], v4, s[16:19], 0 offen')
        if stamp:
            I('s_waitcnt lgkmcnt(0)'); I('s_sub_u32 s86, s86, s92'); I('s_lshl_b32 s86, s86, 16'); I('s_sub_u32 s88, s88, s92'); I('s_or_b32 s88, s88, s86'); I('s_add_u32 s88, s88, s92')
            stamp_end(I, 24, 20, STAMP_OFF + 0x10000)
        if kg == 0: I('s_endpgm')
    g.raw('k2_end:')
    I('s_endpgm')

K2_DESC = """
.amdhsa_kernel k2_kernel
  .amdhsa_next_free_vgpr 192
  .amdhsa_next_free_sgpr 100
  .amdhsa_accum_offset 192
  .amdhsa_group_segment_fixed_size 0
  .amdhsa_kernarg_size 96
  .amdhsa_user_sgpr_count 2
  .amdhsa_user_sgpr_kernarg_segment_ptr 1
  .amdhsa_system_sgpr_workgroup_id_x 1
  .amdhsa_float_denorm_mode_32 3
.end_amdhsa_kernel
"""
```

```python
import sys; sys.path.insert(0,"dev")
import gen_k1, gen_k2
from asmgen import Gen
NAME = "recurrent_scan__linear_kernel_hedgehog__dense_activation_squared_relu__prompt"
def build_text(stamp=False, fused=True, **kw):
    hdr = open(f"cdna_kernels/{NAME}.s.ref").read().split("\n")
    head = [l for l in hdr if l.startswith(";") and "@launch" not in l and "Override launch" not in l and "grid=ceil" not in l]
    g = Gen()
    for l in head: g.raw(l)
    if fused:
        kn = NAME + "_kernel"
        g.raw('; @launch grid=(256,1,1) block=(512,1,1) lds=%d' % gen_k1.K1_LDS)
        g.raw('.amdgcn_target "amdgcn-amd-amdhsa--gfx950"'); g.raw('.text')
        g.raw(f'.globl {kn}\n.type {kn},@function')
        gen_k1.gen_k1(g, stamp=stamp, fused=True, kname=kn, **kw)
        g.raw('.section .rodata,"a"'); g.raw('.p2align 6'); g.raw(gen_k1.K1_DESC.strip().replace("k1_kernel", kn))
        return g.text()
    g.raw('; @launch kernel=k1_kernel grid=(256,1,1) block=(512,1,1) lds=%d' % gen_k1.K1_LDS)
    g.raw('; @launch kernel=k2_kernel grid=(256,1,1) block=(512,1,1) lds=%d' % gen_k2.K2_LDS)
    g.raw('.amdgcn_target "amdgcn-amd-amdhsa--gfx950"'); g.raw('.text')
    g.raw('.globl k1_kernel\n.type k1_kernel,@function\n.globl k2_kernel\n.type k2_kernel,@function')
    gen_k1.gen_k1(g, stamp=stamp, **kw)
    gen_k2.gen_k2(g, 5, stamp=stamp, ks=8)
    g.raw('.section .rodata,"a"'); g.raw('.p2align 6'); g.raw(gen_k1.K1_DESC.strip()); g.raw('.p2align 6'); g.raw(gen_k2.K2_DESC.strip())
    return g.text()
if __name__ == "__main__":
    open(f"cdna_kernels/{NAME}.s", "w").write(build_text(False))
    print("written")
```

```python
from asmgen import *
from gen_k2 import HF_OFF, WF_OFF, KVP_OFF, ZP_OFF, FLAG_OFF, WS_SIZE, STAMP_OFF, NKS, LOG2E, stamp_begin, stamp_end

K1_LDS = 163840
SLOT = 45056
M = 3 * SLOT
M_CS = M + 12288
M_CST = M + 2048
M_Z0 = M
M_CNT = M + 1024
M_ZERO = M + 1088
M_STAT = M + 8192
M_BIAS = M + 3072
M_RST = M + 4096
M_KVL = M + 5120
M_ZL = M + 7168
M_VX = 0
M_KVX = 32768
M_ZX = M_VX
M_DUMMY = M + 1152
M_SJ = M + 16384
M_WP = M + 16384 + 9216

XF = 128
WFR = 96
RSQ, RS1 = 3072, 3584

SX, SQ, SP, SO, S1, SB1, S2, SD, SW = 4, 8, 12, 16, 20, 24, 28, 32, 36
sWAVE, sRB, sCG, sR4, sTYPE, sHT0, sONES, sLOG, sMASK, sRT = 40, 41, 42, 43, 44, 45, 46, 47, 48, 49
sXE, sXO, sXM, sWA, sWB, sWM, sPP, sPUB, sPM = 52, 53, 54, 55, 56, 57, 58, 59, 51

P2_NS, P2_KS = 4, 8
def part2_setup(I):
    KS = P2_KS
    I('s_and_b32 s64, s2, 7'); I('s_lshl_b32 s64, s64, 2'); I('s_lshr_b32 s65, s2, 6'); I('s_add_u32 s64, s64, s65')
    I('s_lshr_b32 s65, s2, 3'); I('s_and_b32 s65, s65, 7')
    I('s_lshl_b32 s64, s64, 1'); I('s_lshl_b32 s65, s65, 1')
    I(f's_lshr_b32 s68, s{sWAVE}, 1'); I('s_add_u32 s68, s68, 2'); I('s_and_b32 s68, s68, 3')
    I('s_and_b32 s69, s68, 1')
    I('s_add_u32 s70, s64, s69'); I('s_add_u32 s71, s65, s69')
    I('s_cmp_ge_u32 s68, 2')
    I('s_cselect_b32 s70, s71, s70')
    I('s_cselect_b32 s71, 0x%x, %d' % (WF_OFF, HF_OFF))
    I(f's_mul_i32 s66, s70, {NKS*1024}'); I('s_add_u32 s66, s66, s71')
    I(f's_and_b32 s71, s{sWAVE}, 1'); I(f's_mul_i32 s71, s71, {KS*512}'); I('s_add_u32 s66, s66, s71')
    I(f's_mul_i32 s67, s68, {KS*1024}'); I('s_add_u32 s67, s67, s71')

def p2_issue(I, s, so=66, sm=67):
    KS, NS = P2_KS, P2_NS
    I(f's_add_u32 m0, s{sm}, {(s % NS) * KS * 4096}')
    for d in range(KS // 2):
        I(f'buffer_load_dwordx4 v4, s[{SW}:{SW+3}], s{so} offen offset:{d*1024} sc1 lds')
    I(f's_add_u32 s{so}, s{so}, {KS*1024}')

def part2_pre(I, g, path):
    part2_setup(I)
    I(f's_load_dwordx4 s[68:71], s[0:1], 64')
    if path == 'A':
        I(f'v_mov_b32 v14, {M_CNT+4}')
        I('s_mov_b32 s61, 0')
        g.label('k2_spk', nop=False)
        I('ds_read_b32 v15, v14')
        I('s_waitcnt lgkmcnt(0)')
        I('v_readfirstlane_b32 s60, v15')
        I('s_add_u32 s61, s61, 1')
        I('s_cmp_ge_u32 s60, 1')
        I('s_cbranch_scc1 k2_spkd')
        I('s_sleep 1')
        I('s_cmp_lt_u32 s61, 0x400000')
        I('s_cbranch_scc1 k2_spk')
        g.label('k2_spkd', nop=False)
        I('v_lshlrev_b32 v14, 2, v1')
        I('s_mov_b32 s61, 0')
        g.label('k2_pollc', nop=False)
        I(f'buffer_load_dword v10, v14, s[{SD}:{SD+3}], 0 offen sc1')
        I('v_and_b32 v15, 3, v1')
        I('s_waitcnt vmcnt(0)')
        I('v_cmp_gt_u32 vcc, 16, v10')
        I('v_cmp_eq_u32 s[62:63], 0, v15')
        I('s_add_u32 s61, s61, 1')
        I('s_and_b64 vcc, vcc, s[62:63]')
        I('s_cmp_eq_u64 vcc, 0')
        I('s_cbranch_scc1 k2_pollcok')
        I('s_sleep 2')
        I('s_cmp_lt_u32 s61, 0x400000')
        I('s_cbranch_scc1 k2_pollc')
        g.label('k2_pollcok', nop=False)
        I('v_and_b32 v14, 31, v1'); I('v_lshlrev_b32 v14, 2, v14')
        I('s_lshl_b32 s62, s65, 6'); I(f's_add_u32 s62, s62, {FLAG_OFF+0x3000}')
        I('s_mov_b32 s61, 0')
        g.label('k2_pollw', nop=False)
        I(f'buffer_load_dword v10, v14, s[{SW}:{SW+3}], s62 offen sc1')
        I('s_waitcnt vmcnt(0)')
        I('v_cmp_ne_u32 vcc, 1, v10')
        I('s_add_u32 s61, s61, 1')
        I('s_cmp_eq_u64 vcc, 0')
        I('s_cbranch_scc1 k2_wok')
        I('s_sleep 2')
        I('s_cmp_lt_u32 s61, 0x400000')
        I('s_cbranch_scc1 k2_pollw')
        g.label('k2_wok', nop=False)
        I('v_and_b32 v14, 15, v1'); I('v_lshlrev_b32 v14, 2, v14')
        I('s_lshr_b32 s62, s64, 2'); I('s_lshl_b32 s62, s62, 7'); I(f's_add_u32 s62, s62, {FLAG_OFF+0x1000}')
        I('s_mov_b32 s61, 0')
        g.label('k2_pollh', nop=False)
        I(f'buffer_load_dword v10, v14, s[{SW}:{SW+3}], s62 offen sc1')
        I('s_waitcnt vmcnt(0)')
        I('v_cmp_ne_u32 vcc, 1, v10')
        I('s_add_u32 s61, s61, 1')
        I('s_cmp_eq_u64 vcc, 0')
        I('s_cbranch_scc1 k2_hok')
        I('s_sleep 2')
        I('s_cmp_lt_u32 s61, 0x400000')
        I('s_cbranch_scc1 k2_pollh')
        g.label('k2_hok', nop=False)
        KS = P2_KS
        I(f's_lshr_b32 s60, s{sWAVE}, 1'); I('s_add_u32 s61, s64, s60'); I(f's_mul_i32 s72, s61, {NKS*1024}')
        I(f's_and_b32 s61, s{sWAVE}, 1'); I(f's_mul_i32 s61, s61, {KS*512}'); I('s_add_u32 s72, s72, s61')
        I(f's_mul_i32 s73, s60, {KS*1024}'); I('s_add_u32 s73, s73, s61')
        for s in range(P2_NS - 1):
            p2_issue(I, s, 72, 73)
            p2_issue(I, s)
    else:
        I(f's_add_u32 s66, s66, {(P2_NS-1)*P2_KS*1024}')

def part2_main(I, g, stamp, marks_out, mark, path, hook):
    KS, NS = P2_KS, P2_NS
    NST, SB, ND = NKS // KS, KS * 4096, KS // 2
    g.forget_pending()
    dt = {}
    if path == 'A':
        for s_ in range(NS - 1):
            for d in range(2 * ND): g.vq.append(set()); g.vm_issued += 1
            dt[s_] = g.vm_tag()
    I('s_waitcnt lgkmcnt(0)')
    mark(3)
    I('s_barrier')
    mark(3)
    I(f's_mov_b32 s{S2}, s68'); I(f's_mov_b32 s{S2+1}, s69'); I(f's_mov_b32 s{S2+2}, 1024'); I(f's_mov_b32 s{S2+3}, 0x20000')
    I(f's_mov_b32 s{SO}, s70'); I(f's_mov_b32 s{SO+1}, s71'); I(f's_mov_b32 s{SO+2}, 0x200000'); I(f's_mov_b32 s{SO+3}, 0x20000')
    I(f's_lshr_b32 s68, s{sR4}, 1'); I(f's_and_b32 s69, s{sR4}, 1')
    I('s_add_u32 s60, s64, s68'); I('s_lshl_b32 s60, s60, 5')
    I('v_add_u32 v6, s60, v2'); I('v_lshlrev_b32 v6, 10, v6')
    I('v_lshlrev_b32 v5, 5, v3')
    I('s_add_u32 s60, s65, s69'); I('s_lshl_b32 s60, s60, 6'); I(f's_lshl_b32 s61, s{sTYPE}, 4'); I('s_add_u32 s60, s60, s61')
    I('v_add_u32 v5, s60, v5'); I('v_add_u32 v6, v6, v5')
    I(f's_mul_i32 s60, s68, {KS*1024}'); I(f's_mul_i32 s61, s{sTYPE}, {ND*1024}'); I('s_add_u32 s60, s60, s61')
    I('v_add_u32 v16, s60, v4')
    I(f's_mul_i32 s60, s69, {KS*1024}'); I('s_add_u32 s60, s60, s61'); I(f's_add_u32 s60, s60, {2*KS*1024}')
    I('v_add_u32 v19, s60, v4')
    GRP = 65536 // SB
    for a in (1, 2):
        I(f'v_add_u32 v{16+a}, {a*GRP*SB}, v16'); I(f'v_add_u32 v{19+a}, {a*GRP*SB}, v19')
    I(f's_xor_b32 s60, s{sWAVE}, 4'); I('s_lshl_b32 s60, s60, 12'); I('v_add_u32 v22, s60, v4')
    I(f's_lshl_b32 s60, s{sWAVE}, 12'); I('v_add_u32 v23, s60, v4')
    I('v_and_b32 v28, 15, v1'); I('v_lshlrev_b32 v28, 2, v28')
    I('s_lshr_b32 s62, s64, 2'); I('s_lshl_b32 s62, s62, 7'); I(f's_add_u32 s62, s62, {FLAG_OFF+0x2000}')
    FB = 128
    def fr(buf, kk, hw): return FB + buf * ND * 8 + kk * 8 + hw * 4
    A1, A2 = 64, 80
    NH = 112 // KS
    def mfmas(s):
        acc = A1 if s < NH else A2
        for kk in range(ND):
            c = '0' if (s in (0, NH) and kk == 0) else vr(acc, 16)
            I(f'v_mfma_f32_32x32x16_bf16 {vr(acc,16)}, {vr(fr(s&1,kk,1),4)}, {vr(fr(s&1,kk,0),4)}, {c}')
    for s in range(NST):
        if s in dt: g.wait_vm(dt[s], ' lgkmcnt(0)')
        else: I('s_waitcnt lgkmcnt(0)')
        I('s_barrier')
        if s == 0: mark(3)
        if s in (0, 3, 5, 7, 9, 11, 12, 15): mark(4)
        slot = s % NS
        a, b = slot // GRP, slot % GRP
        for kk in range(ND):
            I(f'ds_read_b128 {vr(fr(s&1,kk,0),4)}, v{16+a} offset:{b*SB+kk*1024}')
            I(f'ds_read_b128 {vr(fr(s&1,kk,1),4)}, v{19+a} offset:{b*SB+kk*1024}')
        if s + NS - 1 == NH:
            I('s_mov_b32 s61, 0')
            g.label(f'k2_pollo{path}', nop=False)
            I('v_cmp_ne_u32 vcc, 1, v29')
            I('s_add_u32 s61, s61, 1')
            I('s_cmp_eq_u64 vcc, 0')
            I(f's_cbranch_scc1 k2_ook{path}')
            svq = (list(g.vq), g.vm_issued)
            I(f'buffer_load_dword v29, v28, s[{SW}:{SW+3}], s62 offen sc1')
            I('s_waitcnt vmcnt(0)')
            g.vq, g.vm_issued = list(svq[0]), svq[1]
            I('s_cmp_lt_u32 s61, 0x400000')
            I(f's_cbranch_scc1 k2_pollo{path}')
            g.label(f'k2_ook{path}', nop=False)
        if s + NS - 1 < NST:
            p2_issue(I, s + NS - 1); dt[s + NS - 1] = g.vm_tag()
        if s + NS - 1 == NH - 2:
            I(f'buffer_load_dword v29, v28, s[{SW}:{SW+3}], s62 offen sc1')
        if s == NST - 4:
            I(f'buffer_load_dwordx4 v[8:11], v6, s[{SX}:{SX+3}], 0 offen')
            I(f'buffer_load_dwordx4 v[12:15], v5, s[{S2}:{S2+3}], 0 offen')
        if s > 0: mfmas(s - 1)
        hook(s)
    mfmas(NST - 1)
    mark(3)
    I('s_barrier')
    I('s_mov_b32 s35, 0xffff0000' if False else f's_mov_b32 s60, 0x%x' % (LOG2E | 0x80000000))
    for kg in ([0] if path == 'A' else [1]):
        keep, give = 8 * kg, 8 * (1 - kg)
        for a, acc in enumerate((A1, A2)):
            for q in range(2):
                I(f'ds_write_b128 v22, {vr(acc+give+4*q,4)} offset:{(a*2+q)*1024}')
        I('s_waitcnt lgkmcnt(0)')
        I('s_barrier')
        T = 96
        for a in range(2):
            for q in range(2):
                I(f'ds_read_b128 {vr(T+a*8+4*q,4)}, v23 offset:{(a*2+q)*1024}')
        for r in range(8): I(f'v_add_f32 v{A1+keep+r}, v{A1+keep+r}, v{T+r}')
        for r in range(8): I(f'v_add_f32 v{A2+keep+r}, v{A2+keep+r}, v{T+8+r}')
        U = 112
        def rnd(a, b, tmp):
            I(f'v_cvt_pk_bf16_f32 v{tmp}, v{a}, v{b}')
            I(f'v_lshlrev_b32 v{a}, 16, v{tmp}')
            I(f'v_and_b32 v{b}, s{sMASK}, v{tmp}')
        P = [(A1 + keep + 2 * i, A1 + keep + 2 * i + 1, A2 + keep + 2 * i, A2 + keep + 2 * i + 1,
              U + 4 * i, U + 4 * i + 1, U + 4 * i + 2, U + 4 * i + 3, i) for i in range(4)]
        for (a, b, c, d, t0, t1, t2, t3, i) in P: rnd(a, b, t0)
        for (a, b, c, d, t0, t1, t2, t3, i) in P:
            I(f'v_lshlrev_b32 v{t1}, 16, v{12+i}'); I(f'v_and_b32 v{t2}, s{sMASK}, v{12+i}')
            I(f'v_add_f32 v{a}, v{a}, v{t1}'); I(f'v_add_f32 v{b}, v{b}, v{t2}')
        for (a, b, c, d, t0, t1, t2, t3, i) in P: rnd(a, b, t0)
        for (a, b, c, d, t0, t1, t2, t3, i) in P:
            I(f'v_mul_f32 v{t1}, s60, v{a}'); I(f'v_mul_f32 v{t2}, s60, v{b}')
            I(f'v_exp_f32 v{t1}, v{t1}'); I(f'v_exp_f32 v{t2}, v{t2}')
        for (a, b, c, d, t0, t1, t2, t3, i) in P:
            I(f'v_add_f32 v{t1}, 1.0, v{t1}'); I(f'v_add_f32 v{t2}, 1.0, v{t2}')
            I(f'v_rcp_f32 v{t1}, v{t1}'); I(f'v_rcp_f32 v{t2}, v{t2}')
        for (a, b, c, d, t0, t1, t2, t3, i) in P:
            I(f'v_mul_f32 v{a}, v{a}, v{t1}'); I(f'v_mul_f32 v{b}, v{b}, v{t2}')
            rnd(c, d, t3)
        for (a, b, c, d, t0, t1, t2, t3, i) in P: rnd(a, b, t0)
        for (a, b, c, d, t0, t1, t2, t3, i) in P:
            I(f'v_mul_f32 v{a}, v{a}, v{c}'); I(f'v_mul_f32 v{b}, v{b}, v{d}')
        for (a, b, c, d, t0, t1, t2, t3, i) in P: rnd(a, b, t0)
        for (a, b, c, d, t0, t1, t2, t3, i) in P:
            I(f'v_lshlrev_b32 v{t1}, 16, v{8+i}'); I(f'v_and_b32 v{t2}, s{sMASK}, v{8+i}')
            I(f'v_add_f32 v{a}, v{a}, v{t1}'); I(f'v_add_f32 v{b}, v{b}, v{t2}')
            I(f'v_cvt_pk_bf16_f32 v{24+i}, v{a}, v{b}')
        I(f'buffer_store_dwordx4 v[24:27], v6, s[{SO}:{SO+3}], 0 offen')
        if stamp:
            marks_out(keep=True)
            stamp_end(I, sWAVE, SW, STAMP_OFF)
        I('s_endpgm')

def gen_k1(g, stamp=False, dbg=0, xmap=0, fused=False, kname='k1_kernel', pro=2, pre=0, late=1, slp=4, dot=0):
    I = g.I
    g.raw('.p2align 8')
    g.raw(kname + ':')
    SC = ' sc1' if fused else ''
    g.reset_state()
    I('s_cmp_ge_u32 s2, 256')
    I('s_cbranch_scc1 k1_end')
    if stamp: stamp_begin(I)
    I(f's_load_dwordx4 s[64:67], s[0:1], 0')
    I(f's_load_dwordx2 s[{S1}:{S1+1}], s[0:1], 40')
    I('v_lshrrev_b32 v4, 6, v0')
    I('v_and_b32 v1, 63, v0')
    I(f'v_readfirstlane_b32 s{sWAVE}, v4')
    I('s_and_b32 s50, s2, 7')
    I('s_lshr_b32 s51, s2, 3')
    if xmap == 0:
        I('s_and_b32 s60, s50, 1'); I('s_lshl_b32 s60, s60, 3'); I('s_and_b32 s61, s51, 7')
        I(f's_add_u32 s{sRB}, s60, s61')
        I('s_lshr_b32 s60, s50, 1'); I('s_lshl_b32 s60, s60, 2'); I('s_lshr_b32 s61, s51, 3')
        I(f's_add_u32 s{sCG}, s60, s61')
    elif xmap == 1:
        I('s_lshl_b32 s60, s50, 1'); I('s_lshr_b32 s61, s51, 4'); I(f's_add_u32 s{sRB}, s60, s61')
        I(f's_and_b32 s{sCG}, s51, 15')
    elif xmap == 2:
        I(f's_and_b32 s{sRB}, s51, 15')
        I('s_lshl_b32 s60, s50, 1'); I('s_lshr_b32 s61, s51, 4')
        I(f's_add_u32 s{sCG}, s60, s61')
    elif xmap == 3:
        I('s_and_b32 s60, s50, 3'); I('s_lshl_b32 s60, s60, 2'); I('s_and_b32 s61, s51, 3'); I(f's_add_u32 s{sRB}, s60, s61')
        I('s_lshr_b32 s60, s50, 2'); I('s_lshl_b32 s60, s60, 3'); I('s_lshr_b32 s61, s51, 2'); I(f's_add_u32 s{sCG}, s60, s61')
    elif xmap == 4:
        I('s_and_b32 s60, s50, 3'); I('s_lshl_b32 s60, s60, 2'); I('s_and_b32 s61, s51, 3'); I(f's_add_u32 s{sRB}, s60, s61')
        I('s_lshr_b32 s60, s50, 2'); I('s_lshr_b32 s61, s51, 2'); I('s_lshl_b32 s61, s61, 1'); I(f's_add_u32 s{sCG}, s60, s61')
    elif xmap == 5:
        I('s_and_b32 s60, s50, 1'); I('s_lshl_b32 s60, s60, 3'); I('s_and_b32 s61, s51, 7'); I(f's_add_u32 s{sRB}, s60, s61')
        I('s_lshr_b32 s60, s50, 1'); I('s_lshr_b32 s61, s51, 3'); I('s_lshl_b32 s61, s61, 2'); I(f's_add_u32 s{sCG}, s60, s61')
    I(f's_and_b32 s{sR4}, s{sWAVE}, 3')
    I(f's_lshr_b32 s{sTYPE}, s{sWAVE}, 2')
    I('v_lshrrev_b32 v8, 3, v1'); I('v_lshlrev_b32 v8, 10, v8')
    I('v_and_b32 v9, 7, v1'); I('v_lshrrev_b32 v6, 4, v1'); I('v_xor_b32 v9, v9, v6'); I('v_lshlrev_b32 v9, 4, v9')
    I('v_add_u32 v8, v8, v9'); I('v_xor_b32 v9, 64, v8')
    I('v_lshrrev_b32 v10, 2, v1'); I(f'v_mul_u32_u24 v10, {RSQ}, v10'); I('v_and_b32 v6, 3, v1'); I('v_lshlrev_b32 v6, 4, v6')
    I('v_add_u32 v10, v10, v6')
    I(f's_lshl_b32 s{sXE}, s{sRB}, 17'); I(f's_lshl_b32 s60, s{sWAVE}, 14'); I(f's_add_u32 s{sXE}, s{sXE}, s60')
    I(f's_add_u32 s{sXO}, s{sXE}, 8192')
    I(f's_lshl_b32 s{sXM}, s{sWAVE}, 11')
    I(f's_mul_i32 s{sWA}, s{sR4}, {16*RSQ}'); I(f's_lshl_b32 s60, s{sCG}, 6'); I(f's_add_u32 s{sWB}, s{sWA}, s60')
    I(f's_add_u32 s60, s{sTYPE}, 1'); I('s_lshl_b32 s60, s60, 10'); I(f's_add_u32 s{sWA}, s{sWB}, s60')
    I(f's_lshl_b32 s{sWM}, s{sR4}, 10')
    I(f's_lshl_b32 s{sPM}, s{sR4}, 11')
    I(f's_lshr_b32 s60, s{sCG}, 2'); I('s_mul_i32 s60, s60, 14'); I(f's_and_b32 s61, s{sCG}, 3'); I('s_lshl_b32 s61, s61, 2')
    I(f's_add_u32 s{sHT0}, s60, s61')
    I('v_lshrrev_b32 v11, 3, v1'); I(f'v_mul_u32_u24 v11, {RS1}, v11'); I('v_add_u32 v11, v11, v6')
    I('v_lshrrev_b32 v6, 2, v1'); I('v_lshrrev_b32 v7, 4, v1'); I('v_xor_b32 v6, v6, v7'); I('v_and_b32 v6, 1, v6')
    I('v_lshlrev_b32 v6, 6, v6'); I('v_add_u32 v11, v11, v6')
    I(f's_mul_i32 s{sPP}, s{sR4}, {16*RS1}'); I(f's_lshl_b32 s60, s{sHT0}, 6'); I(f's_add_u32 s{sPP}, s{sPP}, s60')
    I(f's_lshl_b32 s60, s{sTYPE}, 7'); I(f's_add_u32 s{sPP}, s{sPP}, s60')
    I('s_waitcnt lgkmcnt(0)')
    I(f's_mov_b32 s{S1+2}, {512*3584}'); I(f's_mov_b32 s{S1+3}, 0x20000')
    I(f's_mov_b32 s{SX}, s64'); I(f's_mov_b32 s{SX+1}, s65'); I(f's_mov_b32 s{SX+2}, 0x200000'); I(f's_mov_b32 s{SX+3}, 0x20000')
    I(f's_mov_b32 s{SQ}, s66'); I(f's_mov_b32 s{SQ+1}, s67'); I(f's_mov_b32 s{SQ+2}, {512*3072}'); I(f's_mov_b32 s{SQ+3}, 0x20000')
    for srd, off in ((SP, 16), (SO, 24), (SB1, 48), (S2, 56), (SD, 80), (SW, 88)):
        I(f's_load_dwordx2 s[{srd}:{srd+1}], s[0:1], {off}')
    if pre:
        I('v_lshlrev_b32 v14, 7, v1')
        I(f's_cmp_lg_u32 s{sWAVE}, {pre-1}')
        I('s_cbranch_scc1 k1_nopre')
        svp = (list(g.vq), list(g.lq), g.vm_issued)
        I('s_mul_i32 s60, s2, 6144'); I('v_min_u32 v15, 6016, v14')
        I(f'buffer_load_dword v156, v15, s[{SQ}:{SQ+3}], s60 offen')
        I('s_mul_i32 s60, s2, 7168'); I('v_min_u32 v15, 7040, v14')
        I(f'buffer_load_dword v157, v15, s[{S1}:{S1+3}], s60 offen')
        g.label('k1_nopre', nop=False)
        g.vq, g.lq, g.vm_issued = list(svp[0]), list(svp[1]), svp[2]
    I(f's_cmp_eq_u32 s{sTYPE}, 1')
    I('s_cbranch_scc1 k1_pathB')
    saved = (list(g.vq), list(g.lq), g.vm_issued)

    mk = [0]
    def mark(tag=0):
        if stamp and tag == ((dbg >> 8) & 0xff) and mk[0] < 8:
            I(f's_memtime s[{74+2*mk[0]}:{75+2*mk[0]}]'); mk[0] += 1
    def marks_out(keep=False):
        if not stamp: return
        I('s_waitcnt lgkmcnt(0)')
        for i in range(8):
            I(f's_sub_u32 s{74+2*i}, s{74+2*i}, s92')
            I(f'v_mov_b32 v{16+i}, s{74+2*i}')
        I('s_lshl_b32 s98, s2, 3'); I(f's_add_u32 s98, s98, s{sWAVE}'); I('s_lshl_b32 s98, s98, 5')
        I('s_add_u32 s98, s98, 0x%x' % (STAMP_OFF + 0x20000))
        I('v_mov_b32 v24, s98')
        I(f's_mov_b32 s{SW+2}, 0x1000000')
        I(f'buffer_store_dwordx4 v[16:19], v24, s[{SW}:{SW+3}], 0 offen')
        I(f'buffer_store_dwordx4 v[20:23], v24, s[{SW}:{SW+3}], 0 offen offset:16')
        mk[0] = 0

    def dma_stage(j, path):
        sb = (j % 3) * SLOT
        G = []
        for e in range(2):
            G.append([f's_add_u32 m0, s{sXM}, {sb + e*1024}',
                      f'buffer_load_dwordx4 v{8+e}, s[{SX}:{SX+3}], s{sXE+e} offen lds',
                      f's_add_u32 s{sXE+e}, s{sXE+e}, 128'])
        G.append([f's_add_u32 m0, s{sWM}, {sb + 16384 + (0 if path == "A" else 4096)}',
                  f'buffer_load_dwordx4 v10, s[{SQ}:{SQ+3}], s{sWA} offen lds',
                  f's_add_u32 s{sWA}, s{sWA}, {64*RSQ}'])
        if path == 'B':
            G.append([f's_add_u32 m0, s{sWM}, {sb + 16384 + 8192}',
                      f'buffer_load_dwordx4 v10, s[{SQ}:{SQ+3}], s{sWB} offen lds',
                      f's_add_u32 s{sWB}, s{sWB}, {64*RSQ}'])
        pb = sb + 28672 + (0 if path == 'A' else 8192)
        for i in range(2):
            G.append([f's_add_u32 m0, s{sPM}, {pb + i*1024}',
                      f'buffer_load_dwordx4 v11, s[{S1}:{S1+3}], s{sPP} offen lds',
                      f's_add_u32 s{sPP}, s{sPP}, {8*RS1 if i == 0 else 56*RS1}'])
        G[-1] = G[-1] + [f'__tag__{j}']
        return G

    def late_setup():
        I('v_and_b32 v2, 31, v1')
        I('v_lshrrev_b32 v3, 5, v1')
        I('v_lshlrev_b32 v4, 4, v1')
        I(f's_lshl_b32 s{sRT}, s{sRB}, 2'); I(f's_add_u32 s{sRT}, s{sRT}, s{sR4}')
        I(f's_mov_b32 s{sONES}, 0x3f803f80')
        I(f's_mov_b32 s{sLOG}, 0x%x' % LOG2E)
        I(f's_mov_b32 s{sMASK}, 0xffff0000')
        I('s_waitcnt lgkmcnt(0)')
        for srd, size in ((SP, 16384), (SO, 512 * 1024), (SB1, 3584), (S2, 1792 * 1024), (SD, 256), (SW, WS_SIZE)):
            I(f's_mov_b32 s{srd+2}, {size}'); I(f's_mov_b32 s{srd+3}, 0x20000')

    def side_job(idx_expr_s, k, sdst):
        I('s_and_b32 s62, s2, 15'); I('s_mul_i32 s62, s62, 9'); I(f's_add_u32 s62, s62, {idx_expr_s}')
        I('s_lshr_b32 s63, s2, 4')
        I('s_lshl_b32 s64, s62, 4')
        I('s_sub_u32 s65, s62, 112'); I('s_lshr_b32 s66, s65, 1'); I('s_lshl_b32 s66, s66, 5'); I('s_and_b32 s65, s65, 1')
        I('s_lshl_b32 s65, s65, 3'); I('s_add_u32 s65, s65, s66')
        I('s_cmp_lt_u32 s62, 112')
        I('s_cselect_b32 s64, s64, s65')
        I(f's_cselect_b32 s{sdst+1}, 1, 0')
        I(f's_cselect_b32 s68, s{S2}, s{SO}'); I(f's_cselect_b32 s69, s{S2+1}, s{SO+1}')
        I(f's_cselect_b32 s70, s{S2+2}, s{SO+2}'); I('s_mov_b32 s71, 0x20000')
        I('s_cselect_b64 vcc, -1, 0')
        I('v_cndmask_b32 v14, v153, v152, vcc')
        I('s_lshl_b32 s64, s64, 10'); I('s_lshl_b32 s65, s63, 6'); I('s_add_u32 s64, s64, s65')
        I(f's_lshl_b32 s65, {idx_expr_s}, 10'); I(f's_add_u32 m0, s65, {M_SJ}')
        I('buffer_load_dwordx4 v14, s[68:71], s64 offen lds')
        I(f's_mul_i32 s{sdst}, s63, {NKS}'); I(f's_add_u32 s{sdst}, s{sdst}, s62'); I(f's_lshl_b32 s{sdst}, s{sdst}, 10')
        I(f's_add_u32 s{sdst}, s{sdst}, {WF_OFF}')
    def side_prep():
        I('v_lshrrev_b32 v152, 2, v1'); I('v_and_b32 v153, 7, v152'); I('v_lshlrev_b32 v152, 10, v152'); I('v_lshlrev_b32 v153, 10, v153')
        I('v_lshlrev_b32 v14, 14, v3'); I('v_add_u32 v153, v153, v14')
        I('v_and_b32 v14, 3, v1'); I('v_lshlrev_b32 v14, 4, v14'); I('v_add_u32 v152, v152, v14'); I('v_add_u32 v153, v153, v14')
    def colchunk(dst):
        I(f'v_and_b32 v{dst}, 1, v1'); I(f'v_lshlrev_b32 v{dst}, 5, v{dst}')
        I('v_and_b32 v15, 16, v1'); I(f'v_add_u32 v{dst}, v{dst}, v15')
        I('v_and_b32 v15, 2, v1'); I('v_lshlrev_b32 v15, 2, v15'); I(f'v_add_u32 v{dst}, v{dst}, v15')
    def side_store(idx_expr_s, vt, sdst):
        I(f's_cmp_eq_u32 s{sdst+1}, 1')
        I('s_cselect_b32 s62, 8, 9'); I('s_cselect_b32 s63, 2, 1'); I('s_lshl_b32 s63, s63, 8')
        I('v_lshlrev_b32 v14, s62, v3'); I('v_add_u32 v14, v14, v154')
        I(f's_lshl_b32 s62, {idx_expr_s}, 10'); I(f's_add_u32 s62, s62, {M_SJ}'); I('v_add_u32 v14, s62, v14')
        I('v_add_u32 v15, s63, v14')
        I(f'ds_read_b64_tr_b16 {vr(vt,2)}, v14')
        I(f'ds_read_b64_tr_b16 {vr(vt+2,2)}, v15')
        I(f'buffer_store_dwordx4 v[{vt}:{vt+3}], v4, s[{SW}:{SW+3}], s{sdst} offen{SC}')
    def side_addr():
        colchunk(154)
        I('v_and_b32 v14, 15, v1'); I('v_lshrrev_b32 v14, 2, v14'); I('v_lshlrev_b32 v14, 6, v14'); I('v_add_u32 v154, v154, v14')

    def wphi_load():
        I(f's_lshl_b32 s60, s{sCG}, 10'); I(f's_mov_b32 m0, {M_WP}')
        I(f'buffer_load_dwordx4 v4, s[{SP}:{SP+3}], s60 offen lds')
    def wphi_build():
        I('v_and_b32 v14, 1, v1'); I('v_lshlrev_b32 v14, 9, v14')
        I('v_lshlrev_b32 v15, 7, v3'); I('v_add_u32 v14, v14, v15')
        I('v_and_b32 v15, 15, v1'); I('v_lshrrev_b32 v15, 2, v15'); I('v_lshlrev_b32 v15, 5, v15'); I('v_add_u32 v14, v14, v15')
        I('v_and_b32 v15, 16, v1'); I('v_add_u32 v14, v14, v15')
        I('v_and_b32 v15, 2, v1'); I('v_lshlrev_b32 v15, 2, v15'); I('v_add_u32 v14, v14, v15')
        I(f'v_add_u32 v14, {M_WP}, v14')
        I('ds_read_b64_tr_b16 v[60:61], v14')
        I('ds_read_b64_tr_b16 v[62:63], v14 offset:256')
        I('v_lshrrev_b32 v13, 2, v2'); I('v_and_b32 v13, 1, v13')
        I('v_cmp_eq_u32 vcc, 0, v13')
        for q in range(4): I(f'v_cndmask_b32 v{56+q}, 0, v{60+q}, vcc')
        for q in range(4): I(f'v_cndmask_b32 v{60+q}, v{60+q}, 0, vcc')

    def tr_addr(dst, pair):
        I(f'v_lshlrev_b32 v{dst}, {10 if pair else 9}, v3')
        I('v_and_b32 v14, 15, v1'); I('v_lshrrev_b32 v15, 2, v14'); I(f'v_lshlrev_b32 v15, {7 if pair else 6}, v15'); I(f'v_add_u32 v{dst}, v{dst}, v15')
        I('v_and_b32 v15, 3, v1'); I('v_lshlrev_b32 v15, 3, v15'); I(f'v_add_u32 v{dst}, v{dst}, v15')
        I('v_and_b32 v15, 16, v1'); I('v_lshlrev_b32 v15, 1, v15'); I(f'v_add_u32 v{dst}, v{dst}, v15')
        if pair:
            I('v_and_b32 v15, 8, v1'); I('v_lshlrev_b32 v15, 3, v15'); I(f'v_add_u32 v{dst}, v{dst}, v15')

    def bmask(dst):
        I('v_and_b32 v14, 15, v1'); I('v_lshrrev_b32 v15, 4, v1'); I('v_and_b32 v15, 1, v15')
        I('v_cmp_eq_u32 vcc, v14, v15')
        I(f'v_mov_b32 v14, s{sONES}')
        for q in range(4): I(f'v_cndmask_b32 v{dst+q}, 0, v14, vcc')

    def sum16_addr(dst, base):
        I('v_and_b32 v14, 15, v1'); I(f'v_lshlrev_b32 v{dst}, 6, v14'); I('v_lshrrev_b32 v15, 4, v1'); I('v_lshlrev_b32 v15, 4, v15')
        I(f'v_add_u32 v{dst}, v{dst}, v15'); I(f'v_add_u32 v{dst}, {base}, v{dst}')
        I('v_cmp_gt_u32 vcc, 2, v14')

    def cs_add(regs, slot):
        sum16_addr(12, M_CS + slot * 512)
        I(f's_lshl_b32 s60, s{sR4}, 7'); I('v_add_u32 v12, s60, v12')
        I('s_and_saveexec_b64 s[62:63], vcc')
        for i, rb_ in enumerate(regs):
            I(f'ds_write_b128 v12, {vr(rb_,4)} offset:{i*512}')
        I('s_mov_b64 exec, s[62:63]')

    def cs_total():
        I(f's_lshl_b32 s60, s{sWAVE}, 9'); I(f's_add_u32 s60, s60, {M_CS}')
        I('v_lshlrev_b32 v12, 2, v2'); I('v_add_u32 v13, s60, v12')
        for w in range(4): I(f'ds_read_b32 v{8+w}, v13 offset:{w*128}')
        I(f's_lshl_b32 s60, s{sWAVE}, 7'); I(f's_add_u32 s60, s60, {M_CST}'); I('v_add_u32 v12, s60, v12')
        I('v_add_f32 v8, v8, v9'); I('v_add_f32 v10, v10, v11'); I('v_add_f32 v8, v8, v10')
        I('ds_write_b32 v12, v8')

    def read_cs(slot, dst, tmp):
        read16(M_CST + slot * 128, dst)

    def phase0(path, hook):
        A = path == 'A'
        n64 = 1 if A else 2
        nt = n64 + 2
        XR, WR = 176, 192
        CSF = 240 if A else 128
        CSA = 160
        I(f's_lshl_b32 s60, s{sR4}, 12')
        I('v_lshlrev_b32 v6, 7, v2'); I('v_add_u32 v6, s60, v6')
        I('v_lshrrev_b32 v7, 1, v2'); I('v_and_b32 v7, 7, v7')
        for j in range(4):
            I(f'v_add_u32 v{16+j}, {2*j}, v3'); I(f'v_xor_b32 v{16+j}, v{16+j}, v7'); I(f'v_lshlrev_b32 v{16+j}, 4, v{16+j}')
            I(f'v_add_u32 v{16+j}, v{16+j}, v6')
        tr_addr(20, False)
        I(f'v_add_u32 v20, {16384 + (0 if A else 4096)}, v20')
        I(f's_lshl_b32 s60, s{sR4}, 10'); I('v_add_u32 v21, s60, v20')
        tr_addr(22, True)
        I(f'v_add_u32 v22, {28672 + (0 if A else 8192)}, v22'); I('v_xor_b32 v23, 64, v22')
        I(f's_lshl_b32 s60, s{sR4}, 11'); I('v_add_u32 v24, s60, v22'); I('v_add_u32 v25, s60, v23')
        for k in (1, 2):
            for i in range(10): I(f'v_add_u32 v{16+10*k+i}, {k*SLOT}, v{16+i}')
        bmask(46)
        for r in (6, 7, 54, 55): I(f'v_mov_b32 v{r}, 0')
        for r in range(CSA, CSA + 4 * nt): I(f'v_mov_b32 v{r}, 0')
        for s in range(8):
            g.wait_vm(tags[s], ' lgkmcnt(0)')
            I('s_barrier')
            if s == 0: mark()
            mark(2)
            ab = 16 + 10 * (s % 3)
            G = []
            if pro - 2 <= s and s + 2 < 8: G = dma_stage(s + 2, path)
            if dbg & 16: G = [[l for l in grp if not l.startswith('buffer_load')] for grp in G]
            G += hook(s)
            gi = [0]
            def dma(n=1):
                for _ in range(n):
                    if gi[0] < len(G):
                        for l in G[gi[0]]: I(l)
                        gi[0] += 1
            def wf(kk, e): return WR + (kk * nt + e) * 4
            def rd_list(kk):
                if dbg & 8: return []
                L = [f'ds_read_b128 {vr(XR+4*kk,4)}, v{ab+kk}']
                for e in range(n64):
                    L.append(f'ds_read_b64_tr_b16 {vr(wf(kk,e),2)}, v{ab+4} offset:{e*4096+kk*1024}')
                    L.append(f'ds_read_b64_tr_b16 {vr(wf(kk,e)+2,2)}, v{ab+4} offset:{e*4096+kk*1024+256}')
                for e in range(2):
                    L.append(f'ds_read_b64_tr_b16 {vr(wf(kk,n64+e),2)}, v{ab+6+e} offset:{kk*2048}')
                    L.append(f'ds_read_b64_tr_b16 {vr(wf(kk,n64+e)+2,2)}, v{ab+6+e} offset:{kk*2048+512}')
                return L
            def mf_list(t):
                if dbg & 4 or t < 0: return []
                kk = t % 4
                x = vr(XR + 4 * kk, 4)
                L = []
                for e in range(nt):
                    acc = 64 + 16 * e
                    c = '0' if t == 0 else vr(acc, 16)
                    if (not A) and e == 0: L.append(f'v_mfma_f32_32x32x16_bf16 {vr(acc,16)}, {x}, {vr(wf(kk,e),4)}, {c}')
                    else: L.append(f'v_mfma_f32_32x32x16_bf16 {vr(acc,16)}, {vr(wf(kk,e),4)}, {x}, {c}')
                return L
            def st_list(t):
                kk = t % 4
                if t < 0 or (dbg & 2): return []
                if dot == 2:
                    if (kk == 3) == A: return []
                elif (kk & 1) != (0 if A else 1): return []
                L = []
                for q in range(4):
                    xr = XR + 4 * kk + q
                    if dot:
                        L += [f'v_dot2c_f32_bf16 v{6+(q&1)}, s{sONES}, v{xr}', f'v_dot2c_f32_bf16 v{54+(q&1)}, v{xr}, v{xr}']
                    else:
                        L += [f'v_lshlrev_b32 v{50+(q&1)*2}, 16, v{xr}', f'v_and_b32 v{51+(q&1)*2}, s{sMASK}, v{xr}',
                              f'v_add_f32 v6, v6, v{50+(q&1)*2}', f'v_fmac_f32 v54, v{50+(q&1)*2}, v{50+(q&1)*2}',
                              f'v_add_f32 v7, v7, v{51+(q&1)*2}', f'v_fmac_f32 v55, v{51+(q&1)*2}, v{51+(q&1)*2}']
                return L
            def csmf(t):
                if dbg & 4 or t < 0: return
                kk = t % 4
                lab = f'k1_cs{path}{t}'
                I(f's_cmp_lg_u32 s{sR4}, {kk}')
                I(f's_cbranch_scc1 {lab}')
                g.skippable([f'v_mfma_f32_16x16x32_bf16 {vr(CSA+4*e,4)}, {vr(wf(kk,e),4)}, v[46:49], {vr(CSA+4*e,4)}' for e in range(nt)])
                g.raw(lab + ':')
            def step(tm, rk):
                Mx = mf_list(tm); R = rd_list(rk) if rk is not None else []; S = st_list(tm)
                n = max(len(Mx), 1)
                for i in range(n):
                    if i < len(Mx): I(Mx[i])
                    for l in R[i * len(R) // n:(i + 1) * len(R) // n]: I(l)
                    for l in S[i * len(S) // n:(i + 1) * len(S) // n]: I(l)
                csmf(tm)
            for j in range(4):
                dma(1 if j < 2 else 2)
                step(4 * s - 2 + j, j)
            dma(9)
            if s == 7:
                step(30, None); step(31, None)
        I('v_add_f32 v6, v6, v7'); I('v_add_f32 v7, v54, v55')
        I(f's_lshl_b32 s60, s{sR4}, 9'); I(f's_add_u32 s60, s60, {M_STAT + (0 if A else 2048)}')
        I('v_lshlrev_b32 v12, 4, v2'); I('v_lshlrev_b32 v13, 3, v3'); I('v_add_u32 v12, v12, v13'); I('v_add_u32 v12, s60, v12')
        I('ds_write_b64 v12, v[6:7]')

    cnt_id = [0]
    def signal(addr_off):
        I('s_waitcnt lgkmcnt(0)')
        I(f'v_mov_b32 v14, {addr_off}'); I('v_mov_b32 v15, 1')
        I('s_mov_b64 exec, 1')
        I('ds_add_u32 v14, v15')
        I('s_mov_b64 exec, -1')
    def spin(addr_v, n):
        cnt_id[0] += 1
        L = f'k1_sp{cnt_id[0]}'
        I('s_mov_b32 s61, 0')
        g.label(L, nop=False)
        I(f'ds_read_b32 v15, v{addr_v}')
        I('s_waitcnt lgkmcnt(0)')
        I('v_readfirstlane_b32 s60, v15')
        I('s_add_u32 s61, s61, 1')
        I(f's_cmp_ge_u32 s60, {n}')
        I(f's_cbranch_scc1 {L}d')
        I('s_cmp_lt_u32 s61, 0x400000')
        I(f's_cbranch_scc1 {L}')
        g.label(L + 'd', nop=False)
    def sync4(cnt_off):
        signal(M_CNT + cnt_off)
        spin(14, 4)

    def bfr(r, t):
        I(f'v_cvt_pk_bf16_f32 v{t}, v{r}, v{r}')
        I(f'v_lshlrev_b32 v{r}, 16, v{t}')

    def stats_final():
        I(f's_lshl_b32 s60, s{sR4}, 9')
        I('v_lshlrev_b32 v16, 4, v2'); I('v_add_u32 v16, s60, v16'); I(f'v_add_u32 v16, {M_STAT}, v16')
        I('ds_read_b128 v[20:23], v16')
        I('ds_read_b128 v[24:27], v16 offset:2048')
        I('v_add_f32 v18, v20, v22'); I('v_add_f32 v19, v24, v26'); I('v_add_f32 v18, v18, v19')
        I('v_add_f32 v20, v21, v23'); I('v_add_f32 v19, v25, v27'); I('v_add_f32 v20, v20, v19')
        I('v_mul_f32 v18, 0x3b000000, v18')
        I('v_mul_f32 v20, 0x3b000000, v20')
        I('v_fma_f32 v20, -v18, v18, v20')
        I('v_max_f32 v20, 0, v20')
        bfr(18, 22); bfr(20, 23)
        I('v_add_f32 v20, 0x3727c5ac, v20')
        bfr(20, 23)
        I('v_sqrt_f32 v20, v20')
        bfr(20, 23)
        I('v_rcp_f32 v6, v20')
        I('v_mul_f32 v7, v18, v6')

    def read16(base, dst):
        I('v_lshlrev_b32 v14, 4, v3'); I(f'v_add_u32 v14, {base}, v14')
        for q in range(4):
            I(f'ds_read_b128 {vr(dst+4*q,4)}, v14 offset:{q*32}')

    def features(acc, D, slot, PH):
        read_cs(slot, 16, 192)
        for r in range(0, 16, 2):
            I(f'v_pk_mul_f32 {vr(16+r,2)}, {vr(16+r,2)}, v[6:7] op_sel:[0,1] op_sel_hi:[1,1]')
            I(f'v_pk_fma_f32 {vr(acc+r,2)}, {vr(acc+r,2)}, v[6:7], {vr(16+r,2)} op_sel:[0,0,0] op_sel_hi:[1,0,1] neg_lo:[0,0,1] neg_hi:[0,0,1]')
        for i in range(8):
            I(f'v_cvt_pk_bf16_f32 v{32+i}, v{acc+2*i}, v{acc+2*i+1}')
        I(f'v_mfma_f32_32x32x16_bf16 {vr(D,16)}, v[56:59], v[32:35], 0')
        I(f'v_mfma_f32_32x32x16_bf16 {vr(D,16)}, v[60:63], v[36:39], {vr(D,16)}')
        I(f'v_max3_f32 v40, v{D}, v{D+1}, v{D+2}'); I(f'v_min3_f32 v41, v{D}, v{D+1}, v{D+2}')
        for r in range(3, 15, 2):
            I(f'v_max3_f32 v40, v40, v{D+r}, v{D+r+1}'); I(f'v_min3_f32 v41, v41, v{D+r}, v{D+r+1}')
        I(f'v_max_f32 v40, v40, v{D+15}'); I(f'v_min_f32 v41, v41, v{D+15}')
        I(f'v_mul_f32 v40, s{sLOG}, v40'); I(f'v_mul_f32 v41, s{sLOG}, v41')
        EP, EN = 16, acc
        for r in range(16):
            I(f'v_fma_f32 v{EP+r}, v{D+r}, s{sLOG}, -v40')
            I(f'v_fma_f32 v{EN+r}, -v{D+r}, s{sLOG}, v41')
        for r in range(16):
            I(f'v_exp_f32 v{EP+r}, v{EP+r}')
            I(f'v_exp_f32 v{EN+r}, v{EN+r}')
        for base, o in ((EP, 42), (EN, 44)):
            I(f'v_pk_add_f32 {vr(o,2)}, {vr(base,2)}, {vr(base+2,2)}')
            for r in range(4, 16, 2):
                I(f'v_pk_add_f32 {vr(o,2)}, {vr(o,2)}, {vr(base+r,2)}')
            I(f'v_add_f32 v{o}, v{o}, v{o+1}')
        I('v_rcp_f32 v42, v42'); I('v_rcp_f32 v44, v44')
        for r in range(0, 16, 2):
            I(f'v_pk_mul_f32 {vr(EP+r,2)}, {vr(EP+r,2)}, v[42:43] op_sel_hi:[1,0]')
            I(f'v_pk_mul_f32 {vr(EN+r,2)}, {vr(EN+r,2)}, v[44:45] op_sel_hi:[1,0]')
        for i in range(8):
            I(f'v_cvt_pk_bf16_f32 v{PH+i}, v{EP+2*i}, v{EP+2*i+1}')
        for i in range(8):
            I(f'v_cvt_pk_bf16_f32 v{PH+8+i}, v{EN+2*i}, v{EN+2*i+1}')

    def h_epi(acc, i, T0=16, T1=32, O=208):
        read_cs(4 + i, T0, 128)
        read16(M_BIAS + i * 128, T1)
        for r in range(0, 16, 2):
            I(f'v_pk_fma_f32 {vr(T0+r,2)}, {vr(T0+r,2)}, v[6:7], {vr(T1+r,2)} op_sel:[0,1,0] op_sel_hi:[1,1,1] neg_lo:[0,0,1] neg_hi:[0,0,1]')
            I(f'v_pk_fma_f32 {vr(acc+r,2)}, {vr(acc+r,2)}, v[6:7], {vr(T0+r,2)} op_sel:[0,0,0] op_sel_hi:[1,0,1] neg_lo:[0,0,1] neg_hi:[0,0,1]')
            I(f'v_max_f32 v{acc+r}, 0, v{acc+r}')
            I(f'v_max_f32 v{acc+r+1}, 0, v{acc+r+1}')
            I(f'v_pk_mul_f32 {vr(acc+r,2)}, {vr(acc+r,2)}, {vr(acc+r,2)}')
        for k in range(8):
            I(f'v_cvt_pk_bf16_f32 v{O+k}, v{acc+2*k}, v{acc+2*k+1}')
        I(f's_mul_i32 s60, s{sRT}, {NKS}'); I(f's_lshl_b32 s61, s{sHT0}, 1'); I('s_add_u32 s60, s60, s61')
        I(f's_add_u32 s60, s60, {2*i}'); I('s_lshl_b32 s60, s60, 10')
        I(f'buffer_store_dwordx4 {vr(O,4)}, v4, s[{SW}:{SW+3}], s60 offen{SC}')
        I(f'buffer_store_dwordx4 {vr(O+4,4)}, v4, s[{SW}:{SW+3}], s60 offen offset:1024{SC}')

    def done_flag(cnt_off, n, flag_base, lab, tag=None, va=14, bywg=False):
        if tag is None: I('s_waitcnt vmcnt(0)')
        else: g.wait_vm(tag)
        I(f'v_mov_b32 v{va}, {M_CNT+cnt_off}'); I(f'v_mov_b32 v{va+1}, 1')
        I('s_mov_b64 exec, 1')
        I(f'ds_add_rtn_u32 v{va+1}, v{va}, v{va+1}')
        I('s_waitcnt lgkmcnt(0)')
        I('s_mov_b64 exec, -1')
        I(f'v_readfirstlane_b32 s61, v{va+1}')
        I(f's_cmp_lg_u32 s61, {n-1}')
        I(f's_cbranch_scc1 {lab}')
        sv3 = (list(g.vq), list(g.lq), g.vm_issued)
        if bywg:
            I('s_lshl_b32 s61, s2, 2'); I(f's_add_u32 s61, s61, {FLAG_OFF+flag_base}')
        else:
            I(f's_lshl_b32 s61, s{sRB}, 7'); I(f's_lshl_b32 s60, s{sCG}, 2'); I('s_add_u32 s61, s61, s60'); I(f's_add_u32 s61, s61, {FLAG_OFF+flag_base}')
        I(f'v_mov_b32 v{va}, s61'); I(f'v_mov_b32 v{va+1}, 1')
        I('s_mov_b64 exec, 1')
        I(f'buffer_store_dword v{va+1}, v{va}, s[{SW}:{SW+3}], 0 offen sc1')
        I('s_mov_b64 exec, -1')
        g.label(lab, nop=False)
        g.vq, g.lq, g.vm_issued = list(sv3[0]), list(sv3[1]), sv3[2]

    tags = {}
    realI = g.I
    def I(text):
        if text.startswith('__tag__'):
            tags[int(text[7:])] = g.vm_tag(); return
        if text == '__side__':
            side_addr(); realI(f's_lshl_b32 s72, s{sR4}, 1'); side_store('s72', 128, 94); realI('s_add_u32 s72, s72, 1'); side_store('s72', 132, 96); side_store('8', 136, 98); wphi_build()
            return
        if text.startswith('__count__'):
            cst = int(text[9:] or 0)
            if late:
                realI('s_lshr_b32 s61, s2, 3'); realI('s_and_b32 s61, s61, 3'); realI('s_lshl_b32 s61, s61, 2'); realI(f's_add_u32 s61, s61, s{sR4}')
                realI(f's_cmp_lg_u32 s61, {4*cst}')
            else:
                realI(f'v_mov_b32 v14, {M_CNT+48}'); realI('v_mov_b32 v15, 1')
                realI('s_mov_b64 exec, 1')
                realI('ds_add_rtn_u32 v15, v14, v15')
                realI('s_waitcnt lgkmcnt(0)')
                realI('s_mov_b64 exec, -1')
                realI('v_readfirstlane_b32 s61, v15')
                realI('s_cmp_lg_u32 s61, 3')
            realI(f's_cbranch_scc1 k1_nocount{cst}')
            sv2 = (list(g.vq), list(g.lq), g.vm_issued)
            realI(f's_lshl_b32 s61, s{sCG}, 4'); realI('v_mov_b32 v14, s61'); realI('v_mov_b32 v15, 1')
            realI('s_mov_b64 exec, 1')
            realI(f'buffer_atomic_add v15, v14, s[{SD}:{SD+3}], 0 offen sc1')
            realI('s_mov_b64 exec, -1')
            g.label(f'k1_nocount{cst}', nop=False)
            g.vq, g.lq, g.vm_issued = list(sv2[0]), list(sv2[1]), sv2[2]
            return
        if text == '__sideB__':
            wphi_build(); return
        realI(text)
    for j in range(pro):
        for grp in dma_stage(j, 'A'):
            for l in grp: I(l)
    late_setup()
    for q in range(4): I(f'v_mov_b32 v{16+q}, 0')
    I(f'v_add_u32 v14, {M_Z0}, v4')
    I('ds_write_b128 v14, v[16:19] offset:1024')
    I(f's_cmp_lg_u32 s{sR4}, 0')
    I('s_cbranch_scc1 k1_noreset')
    svr = (list(g.vq), list(g.lq), g.vm_issued)
    I(f's_lshl_b32 s60, s{sCG}, 7'); I(f's_lshl_b32 s61, s{sRB}, 2'); I('s_add_u32 s60, s60, s61'); I(f's_add_u32 s60, s60, {FLAG_OFF}')
    I(f's_lshl_b32 s61, s{sRB}, 7'); I(f's_lshl_b32 s62, s{sCG}, 2'); I('s_add_u32 s61, s61, s62'); I(f's_add_u32 s61, s61, {FLAG_OFF}')
    I('v_lshlrev_b32 v14, 12, v1'); I('v_add_u32 v14, s61, v14'); I('v_mov_b32 v15, s60')
    I('v_cmp_eq_u32 vcc, 0, v1'); I('v_cndmask_b32 v14, v14, v15, vcc')
    I('s_lshl_b32 s60, s2, 2'); I(f's_add_u32 s60, s60, {FLAG_OFF+0x3000}'); I('v_mov_b32 v15, s60')
    I('v_cmp_eq_u32 vcc, 3, v1'); I('v_cndmask_b32 v14, v14, v15, vcc'); I('v_mov_b32 v15, 0')
    I('s_mov_b64 exec, 15')
    I(f'buffer_store_dword v15, v14, s[{SW}:{SW+3}], 0 offen sc1')
    I('s_mov_b64 exec, -1')
    g.label('k1_noreset', nop=False)
    g.vq, g.lq, g.vm_issued = list(svr[0]), list(svr[1]), svr[2]
    wphi_load()
    side_prep()
    I(f's_lshl_b32 s72, s{sR4}, 1')
    side_job('s72', 0, 94)
    I('s_add_u32 s72, s72, 1')
    side_job('s72', 1, 96)
    side_job('8', 2, 98)
    def hookA(s):
        if late: return [[f'__count__{s-2}']] if 2 <= s <= 5 else [['__side__']] if s == 6 else []
        return [['__side__']] if s == 3 else [['__count__']] if s == 6 else []
    phase0('A', hookA)
    cs_add([160], 0)
    cs_add([164, 168], 4)
    I('s_waitcnt lgkmcnt(0)')
    I('s_barrier')
    mark(); mark(1); mark(3)
    cs_total()
    stats_final()
    I('s_waitcnt lgkmcnt(0)')
    I('s_barrier')
    features(64, 112, 0, 32)
    mark(1)
    I('v_and_b32 v16, 15, v2'); I('v_lshrrev_b32 v17, 4, v2'); I('v_xor_b32 v17, v17, v3'); I('v_lshlrev_b32 v17, 6, v17')
    I('v_add_u32 v16, v16, v17')
    I('v_mov_b32 v18, 0x3f80'); I('v_mov_b32 v19, 0x3f800000')
    for mq in range(8):
        I(f'v_cmp_eq_u32 vcc, {2*mq}, v16')
        I(f'v_cndmask_b32 v{48+mq}, 0, v18, vcc')
        I(f'v_cmp_eq_u32 vcc, {2*mq+1}, v16')
        I(f'v_cndmask_b32 v{48+mq}, v{48+mq}, v19, vcc')
    DT = (112, 176)
    for tl in range(2):
        D = DT[tl]
        I(f'v_mfma_f32_32x32x16_bf16 {vr(D,16)}, {vr(32+8*tl,4)}, v[48:51], 0')
        I(f'v_mfma_f32_32x32x16_bf16 {vr(D,16)}, {vr(36+8*tl,4)}, v[52:55], {vr(D,16)}')
    I(f's_lshl_b32 s60, s{sR4}, 2'); I(f's_add_u32 s60, s60, {M_CNT+16}'); I('v_mov_b32 v14, s60')
    spin(14, 1)
    I(f's_lshl_b32 s60, s{sR4}, 11'); I(f's_add_u32 s60, s60, {M_VX}'); I('v_add_u32 v12, s60, v4')
    I('ds_read_b128 v[48:51], v12'); I('ds_read_b128 v[52:55], v12 offset:1024')
    for tl in range(2):
        D = DT[tl]
        I(f'v_add_f32 v{8+tl}, v{D}, v{D+1}'); I(f'v_add_f32 v{10+tl}, v{D+2}, v{D+3}')
        for r in range(4, 16, 2):
            I(f'v_add_f32 v{8+tl}, v{8+tl}, v{D+r}'); I(f'v_add_f32 v{10+tl}, v{10+tl}, v{D+r+1}')
        I(f'v_add_f32 v{8+tl}, v{8+tl}, v{10+tl}')
        for i in range(8):
            I(f'v_cvt_pk_bf16_f32 v{16+8*tl+i}, v{D+2*i}, v{D+2*i+1}')
    for tl, T in ((0, 32), (1, 192)):
        I(f'v_mfma_f32_32x32x16_bf16 {vr(T,16)}, {vr(16+8*tl,4)}, v[48:51], 0')
        I(f'v_mfma_f32_32x32x16_bf16 {vr(T,16)}, {vr(20+8*tl,4)}, v[52:55], {vr(T,16)}')
    I('v_and_b32 v10, 16, v1'); I('v_cmp_ne_u32 vcc, 0, v10')
    for tl, T in ((0, 32), (1, 192)):
        for j in range(8):
            I(f'v_cndmask_b32 v{64+8*tl+j}, v{T+j}, v{T+8+j}, vcc')
    I(f's_lshl_b32 s60, s{sR4}, 12'); I(f's_add_u32 s60, s60, {M_KVX}')
    I('v_add_u32 v14, s60, v4')
    for q in range(4):
        I(f'ds_write_b128 v14, {vr(64+4*q,4)} offset:{q*1024}')
    I(f's_lshl_b32 s60, s{sR4}, 11'); I(f's_add_u32 s60, s60, {M_ZX}')
    I('v_lshlrev_b32 v11, 3, v1'); I('v_add_u32 v14, s60, v11')
    I('ds_write_b64 v14, v[8:9]')
    I('s_waitcnt lgkmcnt(0)')
    I(f'v_mov_b32 v14, {M_CNT}'); I('v_mov_b32 v10, 1')
    I('s_mov_b64 exec, 1')
    I('ds_add_rtn_u32 v10, v14, v10')
    I('s_waitcnt lgkmcnt(0)')
    I('s_mov_b64 exec, -1')
    I(f'v_readfirstlane_b32 s{sPUB}, v10')
    mark(5)
    I(f's_cmp_lg_u32 s{sPUB}, 3')
    I('s_cbranch_scc1 k1_nopub')
    sv = (list(g.vq), list(g.lq), g.vm_issued)
    I(f'v_add_u32 v14, {M_KVX}, v4')
    PB = (16, 32, 64, 192)
    for w in range(4):
        for q in range(4):
            I(f'ds_read_b128 {vr(PB[w]+4*q,4)}, v14 offset:{w*4096+q*1024}')
    I(f'v_add_u32 v14, {M_ZX}, v11')
    for w in range(4):
        I(f'ds_read_b64 {vr(48+2*w,2)}, v14 offset:{w*2048}')
    for r in range(16):
        I(f'v_add_f32 v{16+r}, v{16+r}, v{32+r}')
        I(f'v_add_f32 v{192+r}, v{192+r}, v{64+r}')
        I(f'v_add_f32 v{16+r}, v{16+r}, v{192+r}')
    for e in range(2):
        I(f'v_add_f32 v{48+e}, v{48+e}, v{50+e}'); I(f'v_add_f32 v{52+e}, v{52+e}, v{54+e}'); I(f'v_add_f32 v{48+e}, v{48+e}, v{52+e}')
    I(f's_lshl_b32 s60, s{sCG}, 4'); I(f's_add_u32 s60, s60, s{sRB}')
    I('s_lshl_b32 s61, s60, 12'); I(f's_add_u32 s61, s61, {KVP_OFF}')
    for q in range(4):
        I(f'buffer_store_dwordx4 {vr(16+4*q,4)}, v4, s[{SW}:{SW+3}], s61 offen offset:{q*1024} sc1')
    I('v_permlane32_swap_b32 v48, v49')
    I('v_add_f32 v48, v48, v49')
    I('s_lshl_b32 s61, s60, 8'); I(f's_add_u32 s61, s61, {ZP_OFF}')
    I('v_lshlrev_b32 v14, 2, v1')
    I(f'buffer_store_dword v48, v14, s[{SW}:{SW+3}], s61 offen sc1')
    mark(5)
    I('s_waitcnt vmcnt(0)')
    mark(5)
    I(f's_lshl_b32 s60, s{sCG}, 7'); I(f's_lshl_b32 s61, s{sRB}, 2'); I('s_add_u32 s60, s60, s61'); I(f's_add_u32 s60, s60, {FLAG_OFF}')
    I('v_mov_b32 v14, s60'); I('v_mov_b32 v15, 1')
    I('s_mov_b64 exec, 1')
    I(f'buffer_store_dword v15, v14, s[{SW}:{SW+3}], 0 offen sc1')
    I('s_mov_b64 exec, -1')
    g.label('k1_nopub')
    g.vq, g.lq, g.vm_issued = list(sv[0]), list(sv[1]), sv[2]
    mark(1)
    done_flag(48, 4, 0x3000, 'k1_wfd', bywg=True)
    h_epi(80, 0)
    h_epi(96, 1, O=216)
    mark(1)
    if fused:
        done_flag(44, 8, 0x1000, 'k1_hdA')
        part2_pre(I, g, 'A')
        part2_main(I, g, stamp, marks_out, mark, 'A', lambda s_: None)
    else:
        marks_out()
        if stamp: stamp_end(I, sWAVE, SW, STAMP_OFF)
        I('s_endpgm')

    g.label('k1_pathB')
    g.vq, g.lq, g.vm_issued = list(saved[0]), list(saved[1]), saved[2]
    tags.clear()
    mk[0] = 0
    for j in range(pro):
        for grp in dma_stage(j, 'B'):
            for l in grp: I(l)
    late_setup()
    wphi_load()
    I('v_lshlrev_b32 v16, 2, v1'); I(f's_lshl_b32 s60, s{sHT0}, 6')
    I(f'buffer_load_dword v144, v16, s[{SB1}:{SB1+3}], s60 offen')
    def hookB(s):
        if s == 3:
            return [['__sideB__', 'v_lshlrev_b32 v146, 16, v144', f'v_and_b32 v147, s{sMASK}, v144',
                     'v_lshlrev_b32 v145, 3, v1', f'v_add_u32 v145, {M_BIAS}, v145', 'ds_write_b64 v145, v[146:147]']]
        return []
    phase0('B', hookB)
    cs_add([160, 164], 1)
    cs_add([168, 172], 6)
    I('s_waitcnt lgkmcnt(0)')
    I('s_barrier')
    mark(); mark(1); mark(3)
    I(f's_lshl_b32 s60, s{sCG}, 4'); I('v_mov_b32 v148, s60')
    I(f'buffer_load_dword v149, v148, s[{SD}:{SD+3}], 0 offen sc1')
    cs_total()
    stats_final()
    I('s_waitcnt lgkmcnt(0)')
    I('s_barrier')
    I(f's_lshl_b32 s60, s{sR4}, 8'); I(f's_add_u32 s60, s60, {M_RST}')
    I('v_lshlrev_b32 v16, 2, v2'); I('v_add_u32 v16, s60, v16')
    I('ds_write_b32 v16, v6'); I('ds_write_b32 v16, v7 offset:128')
    I('v_lshlrev_b32 v14, 4, v3'); I('v_add_u32 v14, s60, v14')
    for q in range(4):
        I(f'ds_read_b128 {vr(16+4*q,4)}, v14 offset:{128+q*32}')
    I('v_lshlrev_b32 v15, 2, v2'); I(f'v_add_u32 v15, {M_CST+128}, v15')
    I('ds_read_b32 v10, v15')
    for q in range(4):
        I(f'ds_read_b128 {vr(32+4*q,4)}, v14 offset:{q*32}')
    for r in range(16):
        I(f'v_mul_f32 v{16+r}, v{16+r}, v10')
        I(f'v_fma_f32 v{64+r}, v{64+r}, v{32+r}, -v{16+r}')
    for i in range(8):
        I(f'v_cvt_pk_bf16_f32 v{48+i}, v{64+2*i}, v{64+2*i+1}')
    I(f's_lshl_b32 s60, s{sR4}, 11'); I(f's_add_u32 s60, s60, {M_VX}'); I('v_add_u32 v12, s60, v4')
    I('ds_write_b128 v12, v[48:51]'); I('ds_write_b128 v12, v[52:55] offset:1024')
    I('s_waitcnt lgkmcnt(0)')
    I(f's_lshl_b32 s60, s{sR4}, 2'); I(f's_add_u32 s60, s60, {M_CNT+16}'); I('v_mov_b32 v14, s60'); I('v_mov_b32 v15, 1')
    I('ds_write_b32 v14, v15')
    mark(1)
    I(f's_and_b32 s60, s{sCG}, 3'); I('s_cmp_eq_u32 s60, 3'); I('s_cbranch_scc1 k1_b_nopair')
    sv = (list(g.vq), list(g.lq), g.vm_issued)
    h_epi(96, 2)
    h_epi(112, 3, O=216)
    g.label('k1_b_nopair')
    g.vq, g.lq, g.vm_issued = list(sv[0]), list(sv[1]), sv[2]
    mark(1)
    features(80, 64, 2, 48)
    mark(1)
    KV0, Z0 = 192, 30
    otag = [None]
    def o_loads():
        I(f's_lshl_b32 s60, s{sCG}, 16'); I(f's_lshl_b32 s61, s{sR4}, 10'); I('s_add_u32 s60, s60, s61'); I(f's_add_u32 s60, s60, {KVP_OFF}')
        I(f's_lshl_b32 s61, s{sCG}, 12'); I(f's_add_u32 s61, s61, {ZP_OFF}')
        for i in range(4):
            I(f'buffer_load_dwordx4 {vr(Z0+4*i,4)}, v4, s[{SW}:{SW+3}], s61 offen offset:{i*1024} sc1')
        for rbp in range(16):
            I(f'buffer_load_dwordx4 {vr(KV0+4*rbp,4)}, v4, s[{SW}:{SW+3}], s60 offen sc1')
            I('s_add_u32 s60, s60, 4096')
    def o_reduce():
        for e in range(4):
            I(f'v_add_f32 v{Z0+e}, v{Z0+e}, v{Z0+4+e}'); I(f'v_add_f32 v{Z0+8+e}, v{Z0+8+e}, v{Z0+12+e}'); I(f'v_add_f32 v{Z0+e}, v{Z0+e}, v{Z0+8+e}')
        for sw in ('v_permlane32_swap_b32', 'v_permlane16_swap_b32'):
            for e in range(4): I(f'v_mov_b32 v{Z0+4+e}, v{Z0+e}')
            for e in range(4):
                I(f'{sw} v{Z0+e}, v{Z0+4+e}')
                I(f'v_add_f32 v{Z0+e}, v{Z0+e}, v{Z0+4+e}')
        I(f'v_cvt_pk_bf16_f32 v{Z0+6}, v{Z0}, v{Z0+1}'); I(f'v_cvt_pk_bf16_f32 v{Z0+7}, v{Z0+2}, v{Z0+3}')
        T0, T1, T2 = Z0 + 8, Z0 + 9, Z0 + 10
        I(f'v_and_b32 v{T0}, 15, v1')
        I(f'v_lshrrev_b32 v{T1}, 3, v{T0}'); I(f'v_lshlrev_b32 v{T1}, 5, v{T1}')
        I(f'v_lshrrev_b32 v{T2}, 2, v{T0}'); I(f'v_and_b32 v{T2}, 1, v{T2}'); I(f'v_lshlrev_b32 v{T2}, 6, v{T2}'); I(f'v_add_u32 v{T1}, v{T1}, v{T2}')
        I(f'v_and_b32 v{T2}, 3, v{T0}'); I(f'v_lshlrev_b32 v{T2}, 3, v{T2}'); I(f'v_add_u32 v{T1}, v{T1}, v{T2}')
        I(f's_lshl_b32 s60, s{sR4}, 7'); I(f's_add_u32 s60, s60, {M_ZL}'); I(f'v_add_u32 v{T1}, s60, v{T1}')
        I(f'ds_write_b64 v{T1}, {vr(Z0+6,2)}')
        for st in (8, 4, 2, 1):
            for i in range(st):
                for e in range(0, 4, 2): I(f'v_pk_add_f32 {vr(KV0+4*i+e,2)}, {vr(KV0+4*i+e,2)}, {vr(KV0+4*(i+st)+e,2)}')
        I(f'v_cvt_pk_bf16_f32 v{KV0+8}, v{KV0}, v{KV0+1}'); I(f'v_cvt_pk_bf16_f32 v{KV0+9}, v{KV0+2}, v{KV0+3}')
        I(f's_lshl_b32 s60, s{sR4}, 4'); I(f's_add_u32 s60, s60, {M_KVL}')
        I(f'v_lshlrev_b32 v{T1}, 6, v2'); I(f'v_lshlrev_b32 v{T0}, 3, v3'); I(f'v_add_u32 v{T1}, v{T1}, v{T0}'); I(f'v_add_u32 v{T1}, s60, v{T1}')
        I(f'ds_write_b64 v{T1}, {vr(KV0+8,2)}')
    def o_final():
        a0, a1, a2, a3 = Z0, Z0 + 1, Z0 + 2, Z0 + 3
        I(f'v_lshrrev_b32 v{a0}, 2, v2'); I(f'v_and_b32 v{a0}, 1, v{a0}')
        I(f'v_lshrrev_b32 v{a1}, 3, v2'); I(f'v_lshlrev_b32 v{a1}, 2, v{a1}'); I(f'v_and_b32 v{a2}, 3, v2'); I(f'v_add_u32 v{a1}, v{a1}, v{a2}')
        I(f'v_lshlrev_b32 v{a2}, 4, v{a0}'); I(f'v_add_u32 v{a1}, v{a1}, v{a2}'); I(f'v_lshlrev_b32 v{a1}, 6, v{a1}'); I(f'v_add_u32 v{a1}, {M_KVL}, v{a1}')
        I(f's_lshl_b32 s60, s{sR4}, 7'); I(f's_add_u32 s60, s60, {M_ZL}')
        I(f'v_lshlrev_b32 v{a2}, 6, v3'); I(f'v_add_u32 v{a2}, s60, v{a2}')
        I(f'v_mov_b32 v{a3}, {M_ZERO}')
        I(f'v_cmp_eq_u32 vcc, v{a0}, v3')
        I(f'v_cndmask_b32 v{a1}, v{a3}, v{a1}, vcc'); I(f'v_cndmask_b32 v{a2}, v{a3}, v{a2}, vcc')
        for m in range(4):
            I(f'ds_read_b128 {vr(192+4*m,4)}, v{a1} offset:{m*16}')
            I(f'ds_read_b128 {vr(208+4*m,4)}, v{a2} offset:{m*16}')
        for m in range(4):
            I(f'v_mfma_f32_32x32x16_bf16 v[224:239], {vr(192+4*m,4)}, {vr(48+4*m,4)}, {"0" if m==0 else "v[224:239]"}')
            I(f'v_mfma_f32_32x32x16_bf16 v[240:255], {vr(208+4*m,4)}, {vr(48+4*m,4)}, {"0" if m==0 else "v[240:255]"}')
        I(f'v_add_f32 v{a0}, 0x358637bd, v240')
        I(f'v_rcp_f32 v{a0}, v{a0}')
        for r in range(16): I(f'v_mul_f32 v{224+r}, v{224+r}, v{a0}')
        for i in range(8): I(f'v_cvt_pk_bf16_f32 v{Z0+4+i}, v{224+2*i}, v{224+2*i+1}')
        I(f's_mul_i32 s60, s{sRT}, {NKS}'); I(f's_lshl_b32 s61, s{sCG}, 1'); I('s_add_u32 s60, s60, s61'); I('s_add_u32 s60, s60, 112')
        I('s_lshl_b32 s60, s60, 10')
        I(f'buffer_store_dwordx4 {vr(Z0+4,4)}, v4, s[{SW}:{SW+3}], s60 offen sc1')
        I(f'buffer_store_dwordx4 {vr(Z0+8,4)}, v4, s[{SW}:{SW+3}], s60 offen offset:1024 sc1')
        otag[0] = g.vm_tag()
    done_flag(44, 8, 0x1000, 'k1_hdB')
    I(f's_cmp_lg_u32 s{sR4}, 0')
    I('s_cbranch_scc1 k1_waitflag')
    I('v_and_b32 v14, 15, v1'); I('v_lshlrev_b32 v14, 2, v14')
    I(f's_lshl_b32 s62, s{sCG}, 7'); I(f's_add_u32 s62, s62, {FLAG_OFF}')
    I(f's_lshl_b32 s60, s{sCG}, 4'); I('v_mov_b32 v12, s60')
    I('s_mov_b32 s61, 0')
    I('v_cmp_gt_u32 s[64:65], 16, v149')
    I('s_branch k1_poll2')
    g.label('k1_poll', nop=False)
    I(f'buffer_load_dword v11, v12, s[{SD}:{SD+3}], 0 offen sc1')
    I('s_waitcnt vmcnt(0)')
    I('v_cmp_gt_u32 s[64:65], 16, v11')
    I('s_add_u32 s61, s61, 1')
    g.label('k1_poll2', nop=False)
    I('s_cmp_ge_u32 s61, 0x400000')
    I('s_cbranch_scc1 k1_pollok')
    I('s_cmp_lg_u64 s[64:65], 0')
    I('s_cbranch_scc1 k1_poll')
    I(f'buffer_load_dword v10, v14, s[{SW}:{SW+3}], s62 offen sc1')
    I('s_waitcnt vmcnt(0)')
    I('v_cmp_ne_u32 vcc, 1, v10')
    I('s_add_u32 s61, s61, 1')
    I('s_cmp_eq_u64 vcc, 0')
    I('s_cbranch_scc1 k1_pollok')
    I(f's_sleep {slp}')
    I('s_cmp_lt_u32 s61, 0x400000')
    I('s_cbranch_scc1 k1_poll2')
    g.label('k1_pollok', nop=False)
    I(f'v_mov_b32 v14, {M_CNT+40}'); I('v_mov_b32 v15, 1')
    I('ds_write_b32 v14, v15')
    I('s_branch k1_polled')
    g.label('k1_waitflag', nop=False)
    I(f'v_mov_b32 v14, {M_CNT+40}')
    spin(14, 1)
    g.label('k1_polled', nop=False)
    g.forget_pending()
    mark(1)
    o_loads()
    o_reduce()
    mark(1)
    sync4(4)
    o_final()
    mark(1)
    def hookP2(s_):
        if s_ == 1: done_flag(52, 4, 0x2000, 'k1_od', tag=otag[0], va=Z0)
    part2_pre(I, g, 'B')
    part2_main(I, g, stamp, marks_out, mark, 'B', hookP2)
    g.raw('k1_end:')
    I('s_endpgm')

K1_DESC = """
.amdhsa_kernel k1_kernel
  .amdhsa_next_free_vgpr 256
  .amdhsa_next_free_sgpr 102
  .amdhsa_accum_offset 256
  .amdhsa_group_segment_fixed_size 0
  .amdhsa_kernarg_size 96
  .amdhsa_user_sgpr_count 2
  .amdhsa_user_sgpr_kernarg_segment_ptr 1
  .amdhsa_system_sgpr_workgroup_id_x 1
  .amdhsa_float_denorm_mode_32 3
.end_amdhsa_kernel
"""
```

```python
from asmgen import *
from gen_k2 import HF_OFF, WF_OFF, KVP_OFF, ZP_OFF, FLAG_OFF, WS_SIZE, STAMP_OFF, NKS, LOG2E, stamp_begin, stamp_end

K1_LDS = 163840
SLOT = 45056
M = 3 * SLOT
M_CS = M + 12288
M_CST = M + 2048
M_Z0 = M
M_CNT = M + 1024
M_ZERO = M + 1088
M_STAT = M + 8192
M_BIAS = M + 3072
M_RST = M + 4096
M_KVL = M + 5120
M_ZL = M + 7168
M_VX = 0
M_KVX = 32768
M_ZX = M_VX
M_DUMMY = M + 1152
M_SJ = M + 16384
M_WP = M + 16384 + 9216

XF = 128
WFR = 96
RSQ, RS1 = 3072, 3584

SX, SQ, SP, SO, S1, SB1, S2, SD, SW = 4, 8, 12, 16, 20, 24, 28, 32, 36
sWAVE, sRB, sCG, sR4, sTYPE, sHT0, sONES, sLOG, sMASK, sRT = 40, 41, 42, 43, 44, 45, 46, 47, 48, 49
sXE, sXO, sXM, sWA, sWB, sWM, sPP, sPUB, sPM = 52, 53, 54, 55, 56, 57, 58, 59, 51

P2_NS, P2_KS = 4, 8
def part2_setup(I):
    KS = P2_KS
    I('s_and_b32 s64, s2, 7'); I('s_lshl_b32 s64, s64, 2'); I('s_lshr_b32 s65, s2, 6'); I('s_add_u32 s64, s64, s65')
    I('s_lshr_b32 s65, s2, 3'); I('s_and_b32 s65, s65, 7')
    I('s_lshl_b32 s64, s64, 1'); I('s_lshl_b32 s65, s65, 1')
    I(f's_lshr_b32 s68, s{sWAVE}, 1'); I('s_add_u32 s68, s68, 2'); I('s_and_b32 s68, s68, 3')
    I('s_and_b32 s69, s68, 1')
    I('s_add_u32 s70, s64, s69'); I('s_add_u32 s71, s65, s69')
    I('s_cmp_ge_u32 s68, 2')
    I('s_cselect_b32 s70, s71, s70')
    I('s_cselect_b32 s71, 0x%x, %d' % (WF_OFF, HF_OFF))
    I(f's_mul_i32 s66, s70, {NKS*1024}'); I('s_add_u32 s66, s66, s71')
    I(f's_and_b32 s71, s{sWAVE}, 1'); I(f's_mul_i32 s71, s71, {KS*512}'); I('s_add_u32 s66, s66, s71')
    I(f's_mul_i32 s67, s68, {KS*1024}'); I('s_add_u32 s67, s67, s71')

def p2_issue(I, s, so=66, sm=67):
    KS, NS = P2_KS, P2_NS
    I(f's_add_u32 m0, s{sm}, {(s % NS) * KS * 4096}')
    for d in range(KS // 2):
        I(f'buffer_load_dwordx4 v4, s[{SW}:{SW+3}], s{so} offen offset:{d*1024}{P2SC} lds')
    I(f's_add_u32 s{so}, s{so}, {KS*1024}')

def part2_pre(I, g, path):
    part2_setup(I)
    I(f's_load_dwordx4 s[68:71], s[0:1], 64')
    if path == 'A':
        I(f'v_mov_b32 v14, {M_CNT+4}')
        I('s_mov_b32 s61, 0')
        g.label('k2_spk', nop=False)
        I('ds_read_b32 v15, v14')
        I('s_waitcnt lgkmcnt(0)')
        I('v_readfirstlane_b32 s60, v15')
        I('s_add_u32 s61, s61, 1')
        I('s_cmp_ge_u32 s60, 1')
        I('s_cbranch_scc1 k2_spkd')
        I('s_sleep 1')
        I('s_cmp_lt_u32 s61, 0x400000')
        I('s_cbranch_scc1 k2_spk')
        g.label('k2_spkd', nop=False)
        I('v_lshlrev_b32 v14, 2, v1')
        I('s_mov_b32 s61, 0')
        g.label('k2_pollc', nop=False)
        I(f'buffer_load_dword v10, v14, s[{SD}:{SD+3}], 0 offen sc1')
        I('v_and_b32 v15, 3, v1')
        I('s_waitcnt vmcnt(0)')
        I('v_cmp_gt_u32 vcc, 16, v10')
        I('v_cmp_eq_u32 s[62:63], 0, v15')
        I('s_add_u32 s61, s61, 1')
        I('s_and_b64 vcc, vcc, s[62:63]')
        I('s_cmp_eq_u64 vcc, 0')
        I('s_cbranch_scc1 k2_pollcok')
        I('s_sleep 2')
        I('s_cmp_lt_u32 s61, 0x400000')
        I('s_cbranch_scc1 k2_pollc')
        g.label('k2_pollcok', nop=False)
        I('v_and_b32 v14, 31, v1'); I('v_lshlrev_b32 v14, 2, v14')
        I('s_lshl_b32 s62, s65, 6'); I(f's_add_u32 s62, s62, {FLAG_OFF+0x3000}')
        I('s_mov_b32 s61, 0')
        g.label('k2_pollw', nop=False)
        I(f'buffer_load_dword v10, v14, s[{SW}:{SW+3}], s62 offen sc1')
        I('s_waitcnt vmcnt(0)')
        I('v_cmp_ne_u32 vcc, 1, v10')
        I('s_add_u32 s61, s61, 1')
        I('s_cmp_eq_u64 vcc, 0')
        I('s_cbranch_scc1 k2_wok')
        I('s_sleep 2')
        I('s_cmp_lt_u32 s61, 0x400000')
        I('s_cbranch_scc1 k2_pollw')
        g.label('k2_wok', nop=False)
        I('v_and_b32 v14, 15, v1'); I('v_lshlrev_b32 v14, 2, v14')
        I('s_lshr_b32 s62, s64, 2'); I('s_lshl_b32 s62, s62, 7'); I(f's_add_u32 s62, s62, {FLAG_OFF+0x1000}')
        I('s_mov_b32 s61, 0')
        g.label('k2_pollh', nop=False)
        I(f'buffer_load_dword v10, v14, s[{SW}:{SW+3}], s62 offen sc1')
        I('s_waitcnt vmcnt(0)')
        I('v_cmp_ne_u32 vcc, 1, v10')
        I('s_add_u32 s61, s61, 1')
        I('s_cmp_eq_u64 vcc, 0')
        I('s_cbranch_scc1 k2_hok')
        I('s_sleep 2')
        I('s_cmp_lt_u32 s61, 0x400000')
        I('s_cbranch_scc1 k2_pollh')
        g.label('k2_hok', nop=False)
        KS = P2_KS
        I(f's_lshr_b32 s60, s{sWAVE}, 1'); I('s_add_u32 s61, s64, s60'); I(f's_mul_i32 s72, s61, {NKS*1024}')
        I(f's_and_b32 s61, s{sWAVE}, 1'); I(f's_mul_i32 s61, s61, {KS*512}'); I('s_add_u32 s72, s72, s61')
        I(f's_mul_i32 s73, s60, {KS*1024}'); I('s_add_u32 s73, s73, s61')
        for s in range(P2_NS - 1):
            p2_issue(I, s, 72, 73)
            p2_issue(I, s)
    else:
        I(f's_add_u32 s66, s66, {(P2_NS-1)*P2_KS*1024}')

def part2_main(I, g, stamp, marks_out, mark, path, hook):
    KS, NS = P2_KS, P2_NS
    NST, SB, ND = NKS // KS, KS * 4096, KS // 2
    g.forget_pending()
    dt = {}
    if path == 'A':
        for s_ in range(NS - 1):
            for d in range(2 * ND): g.vq.append(set()); g.vm_issued += 1
            dt[s_] = g.vm_tag()
    I('s_waitcnt lgkmcnt(0)')
    mark(3)
    I('s_barrier')
    mark(3)
    I(f's_mov_b32 s{S2}, s68'); I(f's_mov_b32 s{S2+1}, s69'); I(f's_mov_b32 s{S2+2}, 1024'); I(f's_mov_b32 s{S2+3}, 0x20000')
    I(f's_mov_b32 s{SO}, s70'); I(f's_mov_b32 s{SO+1}, s71'); I(f's_mov_b32 s{SO+2}, 0x200000'); I(f's_mov_b32 s{SO+3}, 0x20000')
    I(f's_lshr_b32 s68, s{sR4}, 1'); I(f's_and_b32 s69, s{sR4}, 1')
    I('s_add_u32 s60, s64, s68'); I('s_lshl_b32 s60, s60, 5')
    I('v_add_u32 v6, s60, v2'); I('v_lshlrev_b32 v6, 10, v6')
    I('v_lshlrev_b32 v5, 5, v3')
    I('s_add_u32 s60, s65, s69'); I('s_lshl_b32 s60, s60, 6'); I(f's_lshl_b32 s61, s{sTYPE}, 4'); I('s_add_u32 s60, s60, s61')
    I('v_add_u32 v5, s60, v5'); I('v_add_u32 v6, v6, v5')
    I(f's_mul_i32 s60, s68, {KS*1024}'); I(f's_mul_i32 s61, s{sTYPE}, {ND*1024}'); I('s_add_u32 s60, s60, s61')
    I('v_add_u32 v16, s60, v4')
    I(f's_mul_i32 s60, s69, {KS*1024}'); I('s_add_u32 s60, s60, s61'); I(f's_add_u32 s60, s60, {2*KS*1024}')
    I('v_add_u32 v19, s60, v4')
    GRP = 65536 // SB
    for a in (1, 2):
        I(f'v_add_u32 v{16+a}, {a*GRP*SB}, v16'); I(f'v_add_u32 v{19+a}, {a*GRP*SB}, v19')
    I(f's_xor_b32 s60, s{sWAVE}, 4'); I('s_lshl_b32 s60, s60, 12'); I('v_add_u32 v22, s60, v4')
    I(f's_lshl_b32 s60, s{sWAVE}, 12'); I('v_add_u32 v23, s60, v4')
    I('v_and_b32 v28, 15, v1'); I('v_lshlrev_b32 v28, 2, v28')
    I('s_lshr_b32 s62, s64, 2'); I('s_lshl_b32 s62, s62, 7'); I(f's_add_u32 s62, s62, {FLAG_OFF+0x2000}')
    FB = 128
    def fr(buf, kk, hw): return FB + buf * ND * 8 + kk * 8 + hw * 4
    A1, A2 = 64, 80
    NH = 112 // KS
    def mfmas(s):
        acc = A1 if s < NH else A2
        for kk in range(ND):
            c = '0' if (s in (0, NH) and kk == 0) else vr(acc, 16)
            I(f'v_mfma_f32_32x32x16_bf16 {vr(acc,16)}, {vr(fr(s&1,kk,1),4)}, {vr(fr(s&1,kk,0),4)}, {c}')
    for s in range(NST):
        if s in dt: g.wait_vm(dt[s], ' lgkmcnt(0)')
        else: I('s_waitcnt lgkmcnt(0)')
        I('s_barrier')
        if s == 0: mark(3)
        if s in (0, 3, 5, 7, 9, 11, 12, 15): mark(4)
        slot = s % NS
        a, b = slot // GRP, slot % GRP
        for kk in range(ND):
            I(f'ds_read_b128 {vr(fr(s&1,kk,0),4)}, v{16+a} offset:{b*SB+kk*1024}')
            I(f'ds_read_b128 {vr(fr(s&1,kk,1),4)}, v{19+a} offset:{b*SB+kk*1024}')
        if s + NS - 1 == NH:
            I('s_mov_b32 s61, 0')
            g.label(f'k2_pollo{path}', nop=False)
            I('v_cmp_ne_u32 vcc, 1, v29')
            I('s_add_u32 s61, s61, 1')
            I('s_cmp_eq_u64 vcc, 0')
            I(f's_cbranch_scc1 k2_ook{path}')
            svq = (list(g.vq), g.vm_issued)
            I(f'buffer_load_dword v29, v28, s[{SW}:{SW+3}], s62 offen sc1')
            I('s_waitcnt vmcnt(0)')
            g.vq, g.vm_issued = list(svq[0]), svq[1]
            I('s_cmp_lt_u32 s61, 0x400000')
            I(f's_cbranch_scc1 k2_pollo{path}')
            g.label(f'k2_ook{path}', nop=False)
        if s + NS - 1 < NST:
            p2_issue(I, s + NS - 1); dt[s + NS - 1] = g.vm_tag()
        if s + NS - 1 == NH - 2:
            I(f'buffer_load_dword v29, v28, s[{SW}:{SW+3}], s62 offen sc1')
        if s == NST - 4:
            I(f'buffer_load_dwordx4 v[8:11], v6, s[{SX}:{SX+3}], 0 offen')
            I(f'buffer_load_dwordx4 v[12:15], v5, s[{S2}:{S2+3}], 0 offen')
        if s > 0: mfmas(s - 1)
        hook(s)
    mfmas(NST - 1)
    mark(3)
    I('s_barrier')
    I('s_mov_b32 s35, 0xffff0000' if False else f's_mov_b32 s60, 0x%x' % (LOG2E | 0x80000000))
    for kg in ([0] if path == 'A' else [1]):
        keep, give = 8 * kg, 8 * (1 - kg)
        for a, acc in enumerate((A1, A2)):
            for q in range(2):
                I(f'ds_write_b128 v22, {vr(acc+give+4*q,4)} offset:{(a*2+q)*1024}')
        I('s_waitcnt lgkmcnt(0)')
        I('s_barrier')
        T = 96
        for a in range(2):
            for q in range(2):
                I(f'ds_read_b128 {vr(T+a*8+4*q,4)}, v23 offset:{(a*2+q)*1024}')
        for r in range(8): I(f'v_add_f32 v{A1+keep+r}, v{A1+keep+r}, v{T+r}')
        for r in range(8): I(f'v_add_f32 v{A2+keep+r}, v{A2+keep+r}, v{T+8+r}')
        U = 112
        def rnd(a, b, tmp):
            I(f'v_cvt_pk_bf16_f32 v{tmp}, v{a}, v{b}')
            I(f'v_lshlrev_b32 v{a}, 16, v{tmp}')
            I(f'v_and_b32 v{b}, s{sMASK}, v{tmp}')
        P = [(A1 + keep + 2 * i, A1 + keep + 2 * i + 1, A2 + keep + 2 * i, A2 + keep + 2 * i + 1,
              U + 4 * i, U + 4 * i + 1, U + 4 * i + 2, U + 4 * i + 3, i) for i in range(4)]
        for (a, b, c, d, t0, t1, t2, t3, i) in P: rnd(a, b, t0)
        for (a, b, c, d, t0, t1, t2, t3, i) in P:
            I(f'v_lshlrev_b32 v{t1}, 16, v{12+i}'); I(f'v_and_b32 v{t2}, s{sMASK}, v{12+i}')
            I(f'v_add_f32 v{a}, v{a}, v{t1}'); I(f'v_add_f32 v{b}, v{b}, v{t2}')
        for (a, b, c, d, t0, t1, t2, t3, i) in P: rnd(a, b, t0)
        for (a, b, c, d, t0, t1, t2, t3, i) in P:
            I(f'v_mul_f32 v{t1}, s60, v{a}'); I(f'v_mul_f32 v{t2}, s60, v{b}')
            I(f'v_exp_f32 v{t1}, v{t1}'); I(f'v_exp_f32 v{t2}, v{t2}')
        for (a, b, c, d, t0, t1, t2, t3, i) in P:
            I(f'v_add_f32 v{t1}, 1.0, v{t1}'); I(f'v_add_f32 v{t2}, 1.0, v{t2}')
            I(f'v_rcp_f32 v{t1}, v{t1}'); I(f'v_rcp_f32 v{t2}, v{t2}')
        for (a, b, c, d, t0, t1, t2, t3, i) in P:
            I(f'v_mul_f32 v{a}, v{a}, v{t1}'); I(f'v_mul_f32 v{b}, v{b}, v{t2}')
            rnd(c, d, t3)
        for (a, b, c, d, t0, t1, t2, t3, i) in P: rnd(a, b, t0)
        for (a, b, c, d, t0, t1, t2, t3, i) in P:
            I(f'v_mul_f32 v{a}, v{a}, v{c}'); I(f'v_mul_f32 v{b}, v{b}, v{d}')
        for (a, b, c, d, t0, t1, t2, t3, i) in P: rnd(a, b, t0)
        for (a, b, c, d, t0, t1, t2, t3, i) in P:
            I(f'v_lshlrev_b32 v{t1}, 16, v{8+i}'); I(f'v_and_b32 v{t2}, s{sMASK}, v{8+i}')
            I(f'v_add_f32 v{a}, v{a}, v{t1}'); I(f'v_add_f32 v{b}, v{b}, v{t2}')
            I(f'v_cvt_pk_bf16_f32 v{24+i}, v{a}, v{b}')
        I(f'buffer_store_dwordx4 v[24:27], v6, s[{SO}:{SO+3}], 0 offen')
        if stamp:
            marks_out(keep=True)
            stamp_end(I, sWAVE, SW, STAMP_OFF)
        I('s_endpgm')

def gen_k1(g, stamp=False, dbg=0, xmap=0, fused=False, kname='k1_kernel', pro=2, pre=0, late=1, slp=4, dot=0, plain=0, p0sc=0, sent=0, rot=0):
    P0 = ('', ' sc1', ' sc0', ' sc0 sc1')[p0sc]
    global P2SC
    P2SC = '' if plain == 1 else ' nt' if plain == 2 else ' sc1'
    I = g.I
    g.raw('.p2align 8')
    g.raw(kname + ':')
    SC = ' sc1' if fused else ''
    g.reset_state()
    I('s_cmp_ge_u32 s2, 256')
    I('s_cbranch_scc1 k1_end')
    if stamp: stamp_begin(I)
    I(f's_load_dwordx4 s[64:67], s[0:1], 0')
    I(f's_load_dwordx2 s[{S1}:{S1+1}], s[0:1], 40')
    I('v_lshrrev_b32 v4, 6, v0')
    I('v_and_b32 v1, 63, v0')
    I(f'v_readfirstlane_b32 s{sWAVE}, v4')
    I('s_and_b32 s50, s2, 7')
    I('s_lshr_b32 s51, s2, 3')
    if xmap == 0:
        I('s_and_b32 s60, s50, 1'); I('s_lshl_b32 s60, s60, 3'); I('s_and_b32 s61, s51, 7')
        I(f's_add_u32 s{sRB}, s60, s61')
        I('s_lshr_b32 s60, s50, 1'); I('s_lshl_b32 s60, s60, 2'); I('s_lshr_b32 s61, s51, 3')
        I(f's_add_u32 s{sCG}, s60, s61')
    elif xmap == 1:
        I('s_lshl_b32 s60, s50, 1'); I('s_lshr_b32 s61, s51, 4'); I(f's_add_u32 s{sRB}, s60, s61')
        I(f's_and_b32 s{sCG}, s51, 15')
    elif xmap == 2:
        I(f's_and_b32 s{sRB}, s51, 15')
        I('s_lshl_b32 s60, s50, 1'); I('s_lshr_b32 s61, s51, 4')
        I(f's_add_u32 s{sCG}, s60, s61')
    elif xmap == 3:
        I('s_and_b32 s60, s50, 3'); I('s_lshl_b32 s60, s60, 2'); I('s_and_b32 s61, s51, 3'); I(f's_add_u32 s{sRB}, s60, s61')
        I('s_lshr_b32 s60, s50, 2'); I('s_lshl_b32 s60, s60, 3'); I('s_lshr_b32 s61, s51, 2'); I(f's_add_u32 s{sCG}, s60, s61')
    elif xmap == 4:
        I('s_and_b32 s60, s50, 3'); I('s_lshl_b32 s60, s60, 2'); I('s_and_b32 s61, s51, 3'); I(f's_add_u32 s{sRB}, s60, s61')
        I('s_lshr_b32 s60, s50, 2'); I('s_lshr_b32 s61, s51, 2'); I('s_lshl_b32 s61, s61, 1'); I(f's_add_u32 s{sCG}, s60, s61')
    elif xmap == 5:
        I('s_and_b32 s60, s50, 1'); I('s_lshl_b32 s60, s60, 3'); I('s_and_b32 s61, s51, 7'); I(f's_add_u32 s{sRB}, s60, s61')
        I('s_lshr_b32 s60, s50, 1'); I('s_lshr_b32 s61, s51, 3'); I('s_lshl_b32 s61, s61, 2'); I(f's_add_u32 s{sCG}, s60, s61')
    if rot == 0: I('s_mov_b32 s101, 0')
    elif rot == 1: I(f's_and_b32 s101, s{sRB}, 7')
    elif rot == 2: I(f's_lshl_b32 s101, s{sCG}, 1'); I(f's_add_u32 s101, s101, s{sRB}'); I('s_and_b32 s101, s101, 7')
    elif rot == 3: I(f's_lshl_b32 s101, s{sCG}, 1'); I('s_and_b32 s101, s101, 7')
    I(f's_and_b32 s{sR4}, s{sWAVE}, 3')
    I(f's_lshr_b32 s{sTYPE}, s{sWAVE}, 2')
    I('v_lshrrev_b32 v8, 3, v1'); I('v_lshlrev_b32 v8, 10, v8')
    I('v_and_b32 v9, 7, v1'); I('v_lshrrev_b32 v6, 4, v1'); I('v_xor_b32 v9, v9, v6'); I('v_lshlrev_b32 v9, 4, v9')
    I('v_add_u32 v8, v8, v9'); I('v_xor_b32 v9, 64, v8')
    I('v_lshrrev_b32 v10, 2, v1'); I(f'v_mul_u32_u24 v10, {RSQ}, v10'); I('v_and_b32 v6, 3, v1'); I('v_lshlrev_b32 v6, 4, v6')
    I('v_add_u32 v10, v10, v6')
    I(f's_lshl_b32 s{sXE}, s{sRB}, 17'); I(f's_lshl_b32 s60, s{sWAVE}, 14'); I(f's_add_u32 s{sXE}, s{sXE}, s60')
    I(f's_add_u32 s{sXO}, s{sXE}, 8192')
    I(f's_lshl_b32 s{sXM}, s{sWAVE}, 11')
    I(f's_mul_i32 s{sWA}, s{sR4}, {16*RSQ}'); I(f's_lshl_b32 s60, s{sCG}, 6'); I(f's_add_u32 s{sWB}, s{sWA}, s60')
    I(f's_add_u32 s60, s{sTYPE}, 1'); I('s_lshl_b32 s60, s60, 10'); I(f's_add_u32 s{sWA}, s{sWB}, s60')
    I(f's_lshl_b32 s{sWM}, s{sR4}, 10')
    I(f's_lshl_b32 s{sPM}, s{sR4}, 11')
    I(f's_lshr_b32 s60, s{sCG}, 2'); I('s_mul_i32 s60, s60, 14'); I(f's_and_b32 s61, s{sCG}, 3'); I('s_lshl_b32 s61, s61, 2')
    I(f's_add_u32 s{sHT0}, s60, s61')
    I('v_lshrrev_b32 v11, 3, v1'); I(f'v_mul_u32_u24 v11, {RS1}, v11'); I('v_add_u32 v11, v11, v6')
    I('v_lshrrev_b32 v6, 2, v1'); I('v_lshrrev_b32 v7, 4, v1'); I('v_xor_b32 v6, v6, v7'); I('v_and_b32 v6, 1, v6')
    I('v_lshlrev_b32 v6, 6, v6'); I('v_add_u32 v11, v11, v6')
    I(f's_mul_i32 s{sPP}, s{sR4}, {16*RS1}'); I(f's_lshl_b32 s60, s{sHT0}, 6'); I(f's_add_u32 s{sPP}, s{sPP}, s60')
    I(f's_lshl_b32 s60, s{sTYPE}, 7'); I(f's_add_u32 s{sPP}, s{sPP}, s60')
    I('s_waitcnt lgkmcnt(0)')
    I(f's_mov_b32 s{S1+2}, {512*3584}'); I(f's_mov_b32 s{S1+3}, 0x20000')
    I(f's_mov_b32 s{SX}, s64'); I(f's_mov_b32 s{SX+1}, s65'); I(f's_mov_b32 s{SX+2}, 0x200000'); I(f's_mov_b32 s{SX+3}, 0x20000')
    I(f's_mov_b32 s{SQ}, s66'); I(f's_mov_b32 s{SQ+1}, s67'); I(f's_mov_b32 s{SQ+2}, {512*3072}'); I(f's_mov_b32 s{SQ+3}, 0x20000')
    for srd, off in ((SP, 16), (SO, 24), (SB1, 48), (S2, 56), (SD, 80), (SW, 88)):
        I(f's_load_dwordx2 s[{srd}:{srd+1}], s[0:1], {off}')
    if pre:
        I('v_lshlrev_b32 v14, 7, v1')
        I(f's_cmp_lg_u32 s{sWAVE}, {pre-1}')
        I('s_cbranch_scc1 k1_nopre')
        svp = (list(g.vq), list(g.lq), g.vm_issued)
        I('s_mul_i32 s60, s2, 6144'); I('v_min_u32 v15, 6016, v14')
        I(f'buffer_load_dword v156, v15, s[{SQ}:{SQ+3}], s60 offen')
        I('s_mul_i32 s60, s2, 7168'); I('v_min_u32 v15, 7040, v14')
        I(f'buffer_load_dword v157, v15, s[{S1}:{S1+3}], s60 offen')
        g.label('k1_nopre', nop=False)
        g.vq, g.lq, g.vm_issued = list(svp[0]), list(svp[1]), svp[2]
    I(f's_cmp_eq_u32 s{sTYPE}, 1')
    I('s_cbranch_scc1 k1_pathB')
    saved = (list(g.vq), list(g.lq), g.vm_issued)

    mk = [0]
    def mark(tag=0):
        if stamp and tag == ((dbg >> 8) & 0xff) and mk[0] < 8:
            I(f's_memtime s[{74+2*mk[0]}:{75+2*mk[0]}]'); mk[0] += 1
    def marks_out(keep=False):
        if not stamp: return
        I('s_waitcnt lgkmcnt(0)')
        for i in range(8):
            I(f's_sub_u32 s{74+2*i}, s{74+2*i}, s92')
            I(f'v_mov_b32 v{16+i}, s{74+2*i}')
        I('s_lshl_b32 s98, s2, 3'); I(f's_add_u32 s98, s98, s{sWAVE}'); I('s_lshl_b32 s98, s98, 5')
        I('s_add_u32 s98, s98, 0x%x' % (STAMP_OFF + 0x20000))
        I('v_mov_b32 v24, s98')
        I(f's_mov_b32 s{SW+2}, 0x1000000')
        I(f'buffer_store_dwordx4 v[16:19], v24, s[{SW}:{SW+3}], 0 offen')
        I(f'buffer_store_dwordx4 v[20:23], v24, s[{SW}:{SW+3}], 0 offen offset:16')
        mk[0] = 0

    def dma_stage(j, path):
        sb = (j % 3) * SLOT
        G = []
        pre_ = [f's_add_u32 s100, s101, {j}', 's_and_b32 s100, s100, 7']
        for e in range(2):
            G.append((pre_ if e == 0 else []) + [f's_add_u32 m0, s{sXM}, {sb + e*1024}',
                      's_lshl_b32 s50, s100, 7', f's_add_u32 s50, s50, s{sXE+e}',
                      f'buffer_load_dwordx4 v{8+e}, s[{SX}:{SX+3}], s50 offen{P0} lds'])
        G.append([f's_add_u32 m0, s{sWM}, {sb + 16384 + (0 if path == "A" else 4096)}',
                  f's_mul_i32 s50, s100, {64*RSQ}', f's_add_u32 s50, s50, s{sWA}',
                  f'buffer_load_dwordx4 v10, s[{SQ}:{SQ+3}], s50 offen{P0} lds'])
        if path == 'B':
            G.append([f's_add_u32 m0, s{sWM}, {sb + 16384 + 8192}',
                      f's_mul_i32 s50, s100, {64*RSQ}', f's_add_u32 s50, s50, s{sWB}',
                      f'buffer_load_dwordx4 v10, s[{SQ}:{SQ+3}], s50 offen{P0} lds'])
        pb = sb + 28672 + (0 if path == 'A' else 8192)
        for i in range(2):
            G.append([f's_add_u32 m0, s{sPM}, {pb + i*1024}',
                      f's_mul_i32 s50, s100, {64*RS1}', f's_add_u32 s50, s50, s{sPP}'] +
                     ([f's_add_u32 s50, s50, {8*RS1}'] if i else []) +
                     [f'buffer_load_dwordx4 v11, s[{S1}:{S1+3}], s50 offen{P0} lds'])
        G[-1] = G[-1] + [f'__tag__{j}']
        return G

    def late_setup():
        I('v_and_b32 v2, 31, v1')
        I('v_lshrrev_b32 v3, 5, v1')
        I('v_lshlrev_b32 v4, 4, v1')
        I(f's_lshl_b32 s{sRT}, s{sRB}, 2'); I(f's_add_u32 s{sRT}, s{sRT}, s{sR4}')
        I(f's_mov_b32 s{sONES}, 0x3f803f80')
        I(f's_mov_b32 s{sLOG}, 0x%x' % LOG2E)
        I(f's_mov_b32 s{sMASK}, 0xffff0000')
        I('s_waitcnt lgkmcnt(0)')
        for srd, size in ((SP, 16384), (SO, 512 * 1024), (SB1, 3584), (S2, 1792 * 1024), (SD, 256), (SW, WS_SIZE)):
            I(f's_mov_b32 s{srd+2}, {size}'); I(f's_mov_b32 s{srd+3}, 0x20000')

    def side_job(idx_expr_s, k, sdst):
        I('s_and_b32 s62, s2, 15'); I('s_mul_i32 s62, s62, 9'); I(f's_add_u32 s62, s62, {idx_expr_s}')
        I('s_lshr_b32 s63, s2, 4')
        I('s_lshl_b32 s64, s62, 4')
        I('s_sub_u32 s65, s62, 112'); I('s_lshr_b32 s66, s65, 1'); I('s_lshl_b32 s66, s66, 5'); I('s_and_b32 s65, s65, 1')
        I('s_lshl_b32 s65, s65, 3'); I('s_add_u32 s65, s65, s66')
        I('s_cmp_lt_u32 s62, 112')
        I('s_cselect_b32 s64, s64, s65')
        I(f's_cselect_b32 s{sdst+1}, 1, 0')
        I(f's_cselect_b32 s68, s{S2}, s{SO}'); I(f's_cselect_b32 s69, s{S2+1}, s{SO+1}')
        I(f's_cselect_b32 s70, s{S2+2}, s{SO+2}'); I('s_mov_b32 s71, 0x20000')
        I('s_cselect_b64 vcc, -1, 0')
        I('v_cndmask_b32 v14, v153, v152, vcc')
        I('s_lshl_b32 s64, s64, 10'); I('s_lshl_b32 s65, s63, 6'); I('s_add_u32 s64, s64, s65')
        I(f's_lshl_b32 s65, {idx_expr_s}, 10'); I(f's_add_u32 m0, s65, {M_SJ}')
        I('buffer_load_dwordx4 v14, s[68:71], s64 offen lds')
        I(f's_mul_i32 s{sdst}, s63, {NKS}'); I(f's_add_u32 s{sdst}, s{sdst}, s62'); I(f's_lshl_b32 s{sdst}, s{sdst}, 10')
        I(f's_add_u32 s{sdst}, s{sdst}, {WF_OFF}')
    def side_prep():
        I('v_lshrrev_b32 v152, 2, v1'); I('v_and_b32 v153, 7, v152'); I('v_lshlrev_b32 v152, 10, v152'); I('v_lshlrev_b32 v153, 10, v153')
        I('v_lshlrev_b32 v14, 14, v3'); I('v_add_u32 v153, v153, v14')
        I('v_and_b32 v14, 3, v1'); I('v_lshlrev_b32 v14, 4, v14'); I('v_add_u32 v152, v152, v14'); I('v_add_u32 v153, v153, v14')
    def colchunk(dst):
        I(f'v_and_b32 v{dst}, 1, v1'); I(f'v_lshlrev_b32 v{dst}, 5, v{dst}')
        I('v_and_b32 v15, 16, v1'); I(f'v_add_u32 v{dst}, v{dst}, v15')
        I('v_and_b32 v15, 2, v1'); I('v_lshlrev_b32 v15, 2, v15'); I(f'v_add_u32 v{dst}, v{dst}, v15')
    def side_store(idx_expr_s, vt, sdst):
        I(f's_cmp_eq_u32 s{sdst+1}, 1')
        I('s_cselect_b32 s62, 8, 9'); I('s_cselect_b32 s63, 2, 1'); I('s_lshl_b32 s63, s63, 8')
        I('v_lshlrev_b32 v14, s62, v3'); I('v_add_u32 v14, v14, v154')
        I(f's_lshl_b32 s62, {idx_expr_s}, 10'); I(f's_add_u32 s62, s62, {M_SJ}'); I('v_add_u32 v14, s62, v14')
        I('v_add_u32 v15, s63, v14')
        I(f'ds_read_b64_tr_b16 {vr(vt,2)}, v14')
        I(f'ds_read_b64_tr_b16 {vr(vt+2,2)}, v15')
        I(f'buffer_store_dwordx4 v[{vt}:{vt+3}], v4, s[{SW}:{SW+3}], s{sdst} offen{SC}')
    def side_addr():
        colchunk(154)
        I('v_and_b32 v14, 15, v1'); I('v_lshrrev_b32 v14, 2, v14'); I('v_lshlrev_b32 v14, 6, v14'); I('v_add_u32 v154, v154, v14')

    def wphi_load():
        I(f's_lshl_b32 s60, s{sCG}, 10'); I(f's_mov_b32 m0, {M_WP}')
        I(f'buffer_load_dwordx4 v4, s[{SP}:{SP+3}], s60 offen lds')
    def wphi_build():
        I('v_and_b32 v14, 1, v1'); I('v_lshlrev_b32 v14, 9, v14')
        I('v_lshlrev_b32 v15, 7, v3'); I('v_add_u32 v14, v14, v15')
        I('v_and_b32 v15, 15, v1'); I('v_lshrrev_b32 v15, 2, v15'); I('v_lshlrev_b32 v15, 5, v15'); I('v_add_u32 v14, v14, v15')
        I('v_and_b32 v15, 16, v1'); I('v_add_u32 v14, v14, v15')
        I('v_and_b32 v15, 2, v1'); I('v_lshlrev_b32 v15, 2, v15'); I('v_add_u32 v14, v14, v15')
        I(f'v_add_u32 v14, {M_WP}, v14')
        I('ds_read_b64_tr_b16 v[60:61], v14')
        I('ds_read_b64_tr_b16 v[62:63], v14 offset:256')
        I('v_lshrrev_b32 v13, 2, v2'); I('v_and_b32 v13, 1, v13')
        I('v_cmp_eq_u32 vcc, 0, v13')
        for q in range(4): I(f'v_cndmask_b32 v{56+q}, 0, v{60+q}, vcc')
        for q in range(4): I(f'v_cndmask_b32 v{60+q}, v{60+q}, 0, vcc')

    def tr_addr(dst, pair):
        I(f'v_lshlrev_b32 v{dst}, {10 if pair else 9}, v3')
        I('v_and_b32 v14, 15, v1'); I('v_lshrrev_b32 v15, 2, v14'); I(f'v_lshlrev_b32 v15, {7 if pair else 6}, v15'); I(f'v_add_u32 v{dst}, v{dst}, v15')
        I('v_and_b32 v15, 3, v1'); I('v_lshlrev_b32 v15, 3, v15'); I(f'v_add_u32 v{dst}, v{dst}, v15')
        I('v_and_b32 v15, 16, v1'); I('v_lshlrev_b32 v15, 1, v15'); I(f'v_add_u32 v{dst}, v{dst}, v15')
        if pair:
            I('v_and_b32 v15, 8, v1'); I('v_lshlrev_b32 v15, 3, v15'); I(f'v_add_u32 v{dst}, v{dst}, v15')

    def bmask(dst):
        I('v_and_b32 v14, 15, v1'); I('v_lshrrev_b32 v15, 4, v1'); I('v_and_b32 v15, 1, v15')
        I('v_cmp_eq_u32 vcc, v14, v15')
        I(f'v_mov_b32 v14, s{sONES}')
        for q in range(4): I(f'v_cndmask_b32 v{dst+q}, 0, v14, vcc')

    def sum16_addr(dst, base):
        I('v_and_b32 v14, 15, v1'); I(f'v_lshlrev_b32 v{dst}, 6, v14'); I('v_lshrrev_b32 v15, 4, v1'); I('v_lshlrev_b32 v15, 4, v15')
        I(f'v_add_u32 v{dst}, v{dst}, v15'); I(f'v_add_u32 v{dst}, {base}, v{dst}')
        I('v_cmp_gt_u32 vcc, 2, v14')

    def cs_add(regs, slot):
        sum16_addr(12, M_CS + slot * 512)
        I(f's_lshl_b32 s60, s{sR4}, 7'); I('v_add_u32 v12, s60, v12')
        I('s_and_saveexec_b64 s[62:63], vcc')
        for i, rb_ in enumerate(regs):
            I(f'ds_write_b128 v12, {vr(rb_,4)} offset:{i*512}')
        I('s_mov_b64 exec, s[62:63]')

    def cs_total():
        I(f's_lshl_b32 s60, s{sWAVE}, 9'); I(f's_add_u32 s60, s60, {M_CS}')
        I('v_lshlrev_b32 v12, 2, v2'); I('v_add_u32 v13, s60, v12')
        for w in range(4): I(f'ds_read_b32 v{8+w}, v13 offset:{w*128}')
        I(f's_lshl_b32 s60, s{sWAVE}, 7'); I(f's_add_u32 s60, s60, {M_CST}'); I('v_add_u32 v12, s60, v12')
        I('v_add_f32 v8, v8, v9'); I('v_add_f32 v10, v10, v11'); I('v_add_f32 v8, v8, v10')
        I('ds_write_b32 v12, v8')

    def read_cs(slot, dst, tmp):
        read16(M_CST + slot * 128, dst)

    def phase0(path, hook):
        A = path == 'A'
        n64 = 1 if A else 2
        nt = n64 + 2
        XR, WR = 176, 192
        CSF = 240 if A else 128
        CSA = 160
        I(f's_lshl_b32 s60, s{sR4}, 12')
        I('v_lshlrev_b32 v6, 7, v2'); I('v_add_u32 v6, s60, v6')
        I('v_lshrrev_b32 v7, 1, v2'); I('v_and_b32 v7, 7, v7')
        for j in range(4):
            I(f'v_add_u32 v{16+j}, {2*j}, v3'); I(f'v_xor_b32 v{16+j}, v{16+j}, v7'); I(f'v_lshlrev_b32 v{16+j}, 4, v{16+j}')
            I(f'v_add_u32 v{16+j}, v{16+j}, v6')
        tr_addr(20, False)
        I(f'v_add_u32 v20, {16384 + (0 if A else 4096)}, v20')
        I(f's_lshl_b32 s60, s{sR4}, 10'); I('v_add_u32 v21, s60, v20')
        tr_addr(22, True)
        I(f'v_add_u32 v22, {28672 + (0 if A else 8192)}, v22'); I('v_xor_b32 v23, 64, v22')
        I(f's_lshl_b32 s60, s{sR4}, 11'); I('v_add_u32 v24, s60, v22'); I('v_add_u32 v25, s60, v23')
        for k in (1, 2):
            for i in range(10): I(f'v_add_u32 v{16+10*k+i}, {k*SLOT}, v{16+i}')
        bmask(46)
        for r in (6, 7, 54, 55): I(f'v_mov_b32 v{r}, 0')
        for r in range(CSA, CSA + 4 * nt): I(f'v_mov_b32 v{r}, 0')
        for s in range(8):
            g.wait_vm(tags[s], ' lgkmcnt(0)')
            I('s_barrier')
            if s == 0: mark()
            mark(2)
            ab = 16 + 10 * (s % 3)
            G = []
            if pro - 2 <= s and s + 2 < 8: G = dma_stage(s + 2, path)
            if dbg & 16: G = [[l for l in grp if not l.startswith('buffer_load')] for grp in G]
            G += hook(s)
            gi = [0]
            def dma(n=1):
                for _ in range(n):
                    if gi[0] < len(G):
                        for l in G[gi[0]]: I(l)
                        gi[0] += 1
            def wf(kk, e): return WR + (kk * nt + e) * 4
            def rd_list(kk):
                if dbg & 8: return []
                L = [f'ds_read_b128 {vr(XR+4*kk,4)}, v{ab+kk}']
                for e in range(n64):
                    L.append(f'ds_read_b64_tr_b16 {vr(wf(kk,e),2)}, v{ab+4} offset:{e*4096+kk*1024}')
                    L.append(f'ds_read_b64_tr_b16 {vr(wf(kk,e)+2,2)}, v{ab+4} offset:{e*4096+kk*1024+256}')
                for e in range(2):
                    L.append(f'ds_read_b64_tr_b16 {vr(wf(kk,n64+e),2)}, v{ab+6+e} offset:{kk*2048}')
                    L.append(f'ds_read_b64_tr_b16 {vr(wf(kk,n64+e)+2,2)}, v{ab+6+e} offset:{kk*2048+512}')
                return L
            def mf_list(t):
                if dbg & 4 or t < 0: return []
                kk = t % 4
                x = vr(XR + 4 * kk, 4)
                L = []
                for e in range(nt):
                    acc = 64 + 16 * e
                    c = '0' if t == 0 else vr(acc, 16)
                    if (not A) and e == 0: L.append(f'v_mfma_f32_32x32x16_bf16 {vr(acc,16)}, {x}, {vr(wf(kk,e),4)}, {c}')
                    else: L.append(f'v_mfma_f32_32x32x16_bf16 {vr(acc,16)}, {vr(wf(kk,e),4)}, {x}, {c}')
                return L
            def st_list(t):
                kk = t % 4
                if t < 0 or (dbg & 2): return []
                if dot == 2:
                    if (kk == 3) == A: return []
                elif (kk & 1) != (0 if A else 1): return []
                L = []
                for q in range(4):
                    xr = XR + 4 * kk + q
                    if dot:
                        L += [f'v_dot2c_f32_bf16 v{6+(q&1)}, s{sONES}, v{xr}', f'v_dot2c_f32_bf16 v{54+(q&1)}, v{xr}, v{xr}']
                    else:
                        L += [f'v_lshlrev_b32 v{50+(q&1)*2}, 16, v{xr}', f'v_and_b32 v{51+(q&1)*2}, s{sMASK}, v{xr}',
                              f'v_add_f32 v6, v6, v{50+(q&1)*2}', f'v_fmac_f32 v54, v{50+(q&1)*2}, v{50+(q&1)*2}',
                              f'v_add_f32 v7, v7, v{51+(q&1)*2}', f'v_fmac_f32 v55, v{51+(q&1)*2}, v{51+(q&1)*2}']
                return L
            def csmf(t):
                if dbg & 4 or t < 0: return
                kk = t % 4
                lab = f'k1_cs{path}{t}'
                I(f's_cmp_lg_u32 s{sR4}, {kk}')
                I(f's_cbranch_scc1 {lab}')
                g.skippable([f'v_mfma_f32_16x16x32_bf16 {vr(CSA+4*e,4)}, {vr(wf(kk,e),4)}, v[46:49], {vr(CSA+4*e,4)}' for e in range(nt)])
                g.raw(lab + ':')
            def step(tm, rk):
                Mx = mf_list(tm); R = rd_list(rk) if rk is not None else []; S = st_list(tm)
                n = max(len(Mx), 1)
                for i in range(n):
                    if i < len(Mx): I(Mx[i])
                    for l in R[i * len(R) // n:(i + 1) * len(R) // n]: I(l)
                    for l in S[i * len(S) // n:(i + 1) * len(S) // n]: I(l)
                csmf(tm)
            for j in range(4):
                dma(1 if j < 2 else 2)
                step(4 * s - 2 + j, j)
            dma(9)
            if s == 7:
                step(30, None); step(31, None)
        I('v_add_f32 v6, v6, v7'); I('v_add_f32 v7, v54, v55')
        I(f's_lshl_b32 s60, s{sR4}, 9'); I(f's_add_u32 s60, s60, {M_STAT + (0 if A else 2048)}')
        I('v_lshlrev_b32 v12, 4, v2'); I('v_lshlrev_b32 v13, 3, v3'); I('v_add_u32 v12, v12, v13'); I('v_add_u32 v12, s60, v12')
        I('ds_write_b64 v12, v[6:7]')

    cnt_id = [0]
    def signal(addr_off):
        I('s_waitcnt lgkmcnt(0)')
        I(f'v_mov_b32 v14, {addr_off}'); I('v_mov_b32 v15, 1')
        I('s_mov_b64 exec, 1')
        I('ds_add_u32 v14, v15')
        I('s_mov_b64 exec, -1')
    def spin(addr_v, n):
        cnt_id[0] += 1
        L = f'k1_sp{cnt_id[0]}'
        I('s_mov_b32 s61, 0')
        g.label(L, nop=False)
        I(f'ds_read_b32 v15, v{addr_v}')
        I('s_waitcnt lgkmcnt(0)')
        I('v_readfirstlane_b32 s60, v15')
        I('s_add_u32 s61, s61, 1')
        I(f's_cmp_ge_u32 s60, {n}')
        I(f's_cbranch_scc1 {L}d')
        I('s_cmp_lt_u32 s61, 0x400000')
        I(f's_cbranch_scc1 {L}')
        g.label(L + 'd', nop=False)
    def sync4(cnt_off):
        signal(M_CNT + cnt_off)
        spin(14, 4)

    def bfr(r, t):
        I(f'v_cvt_pk_bf16_f32 v{t}, v{r}, v{r}')
        I(f'v_lshlrev_b32 v{r}, 16, v{t}')

    def stats_final():
        I(f's_lshl_b32 s60, s{sR4}, 9')
        I('v_lshlrev_b32 v16, 4, v2'); I('v_add_u32 v16, s60, v16'); I(f'v_add_u32 v16, {M_STAT}, v16')
        I('ds_read_b128 v[20:23], v16')
        I('ds_read_b128 v[24:27], v16 offset:2048')
        I('v_add_f32 v18, v20, v22'); I('v_add_f32 v19, v24, v26'); I('v_add_f32 v18, v18, v19')
        I('v_add_f32 v20, v21, v23'); I('v_add_f32 v19, v25, v27'); I('v_add_f32 v20, v20, v19')
        I('v_mul_f32 v18, 0x3b000000, v18')
        I('v_mul_f32 v20, 0x3b000000, v20')
        I('v_fma_f32 v20, -v18, v18, v20')
        I('v_max_f32 v20, 0, v20')
        bfr(18, 22); bfr(20, 23)
        I('v_add_f32 v20, 0x3727c5ac, v20')
        bfr(20, 23)
        I('v_sqrt_f32 v20, v20')
        bfr(20, 23)
        I('v_rcp_f32 v6, v20')
        I('v_mul_f32 v7, v18, v6')

    def read16(base, dst):
        I('v_lshlrev_b32 v14, 4, v3'); I(f'v_add_u32 v14, {base}, v14')
        for q in range(4):
            I(f'ds_read_b128 {vr(dst+4*q,4)}, v14 offset:{q*32}')

    def features(acc, D, slot, PH):
        read_cs(slot, 16, 192)
        for r in range(0, 16, 2):
            I(f'v_pk_mul_f32 {vr(16+r,2)}, {vr(16+r,2)}, v[6:7] op_sel:[0,1] op_sel_hi:[1,1]')
            I(f'v_pk_fma_f32 {vr(acc+r,2)}, {vr(acc+r,2)}, v[6:7], {vr(16+r,2)} op_sel:[0,0,0] op_sel_hi:[1,0,1] neg_lo:[0,0,1] neg_hi:[0,0,1]')
        for i in range(8):
            I(f'v_cvt_pk_bf16_f32 v{32+i}, v{acc+2*i}, v{acc+2*i+1}')
        I(f'v_mfma_f32_32x32x16_bf16 {vr(D,16)}, v[56:59], v[32:35], 0')
        I(f'v_mfma_f32_32x32x16_bf16 {vr(D,16)}, v[60:63], v[36:39], {vr(D,16)}')
        I(f'v_max3_f32 v40, v{D}, v{D+1}, v{D+2}'); I(f'v_min3_f32 v41, v{D}, v{D+1}, v{D+2}')
        for r in range(3, 15, 2):
            I(f'v_max3_f32 v40, v40, v{D+r}, v{D+r+1}'); I(f'v_min3_f32 v41, v41, v{D+r}, v{D+r+1}')
        I(f'v_max_f32 v40, v40, v{D+15}'); I(f'v_min_f32 v41, v41, v{D+15}')
        I(f'v_mul_f32 v40, s{sLOG}, v40'); I(f'v_mul_f32 v41, s{sLOG}, v41')
        EP, EN = 16, acc
        for r in range(16):
            I(f'v_fma_f32 v{EP+r}, v{D+r}, s{sLOG}, -v40')
            I(f'v_fma_f32 v{EN+r}, -v{D+r}, s{sLOG}, v41')
        for r in range(16):
            I(f'v_exp_f32 v{EP+r}, v{EP+r}')
            I(f'v_exp_f32 v{EN+r}, v{EN+r}')
        for base, o in ((EP, 42), (EN, 44)):
            I(f'v_pk_add_f32 {vr(o,2)}, {vr(base,2)}, {vr(base+2,2)}')
            for r in range(4, 16, 2):
                I(f'v_pk_add_f32 {vr(o,2)}, {vr(o,2)}, {vr(base+r,2)}')
            I(f'v_add_f32 v{o}, v{o}, v{o+1}')
        I('v_rcp_f32 v42, v42'); I('v_rcp_f32 v44, v44')
        for r in range(0, 16, 2):
            I(f'v_pk_mul_f32 {vr(EP+r,2)}, {vr(EP+r,2)}, v[42:43] op_sel_hi:[1,0]')
            I(f'v_pk_mul_f32 {vr(EN+r,2)}, {vr(EN+r,2)}, v[44:45] op_sel_hi:[1,0]')
        for i in range(8):
            I(f'v_cvt_pk_bf16_f32 v{PH+i}, v{EP+2*i}, v{EP+2*i+1}')
        for i in range(8):
            I(f'v_cvt_pk_bf16_f32 v{PH+8+i}, v{EN+2*i}, v{EN+2*i+1}')

    def h_epi(acc, i, T0=16, T1=32, O=208):
        read_cs(4 + i, T0, 128)
        read16(M_BIAS + i * 128, T1)
        for r in range(0, 16, 2):
            I(f'v_pk_fma_f32 {vr(T0+r,2)}, {vr(T0+r,2)}, v[6:7], {vr(T1+r,2)} op_sel:[0,1,0] op_sel_hi:[1,1,1] neg_lo:[0,0,1] neg_hi:[0,0,1]')
            I(f'v_pk_fma_f32 {vr(acc+r,2)}, {vr(acc+r,2)}, v[6:7], {vr(T0+r,2)} op_sel:[0,0,0] op_sel_hi:[1,0,1] neg_lo:[0,0,1] neg_hi:[0,0,1]')
            I(f'v_max_f32 v{acc+r}, 0, v{acc+r}')
            I(f'v_max_f32 v{acc+r+1}, 0, v{acc+r+1}')
            I(f'v_pk_mul_f32 {vr(acc+r,2)}, {vr(acc+r,2)}, {vr(acc+r,2)}')
        for k in range(8):
            I(f'v_cvt_pk_bf16_f32 v{O+k}, v{acc+2*k}, v{acc+2*k+1}')
        I(f's_mul_i32 s60, s{sRT}, {NKS}'); I(f's_lshl_b32 s61, s{sHT0}, 1'); I('s_add_u32 s60, s60, s61')
        I(f's_add_u32 s60, s60, {2*i}'); I('s_lshl_b32 s60, s60, 10')
        I(f'buffer_store_dwordx4 {vr(O,4)}, v4, s[{SW}:{SW+3}], s60 offen{SC}')
        I(f'buffer_store_dwordx4 {vr(O+4,4)}, v4, s[{SW}:{SW+3}], s60 offen offset:1024{SC}')

    def done_flag(cnt_off, n, flag_base, lab, tag=None, va=14, bywg=False):
        if tag is None: I('s_waitcnt vmcnt(0)')
        else: g.wait_vm(tag)
        I(f'v_mov_b32 v{va}, {M_CNT+cnt_off}'); I(f'v_mov_b32 v{va+1}, 1')
        I('s_mov_b64 exec, 1')
        I(f'ds_add_rtn_u32 v{va+1}, v{va}, v{va+1}')
        I('s_waitcnt lgkmcnt(0)')
        I('s_mov_b64 exec, -1')
        I(f'v_readfirstlane_b32 s61, v{va+1}')
        I(f's_cmp_lg_u32 s61, {n-1}')
        I(f's_cbranch_scc1 {lab}')
        sv3 = (list(g.vq), list(g.lq), g.vm_issued)
        if bywg:
            I('s_lshl_b32 s61, s2, 2'); I(f's_add_u32 s61, s61, {FLAG_OFF+flag_base}')
        else:
            I(f's_lshl_b32 s61, s{sRB}, 7'); I(f's_lshl_b32 s60, s{sCG}, 2'); I('s_add_u32 s61, s61, s60'); I(f's_add_u32 s61, s61, {FLAG_OFF+flag_base}')
        I(f'v_mov_b32 v{va}, s61'); I(f'v_mov_b32 v{va+1}, 1')
        I('s_mov_b64 exec, 1')
        I(f'buffer_store_dword v{va+1}, v{va}, s[{SW}:{SW+3}], 0 offen sc1')
        I('s_mov_b64 exec, -1')
        g.label(lab, nop=False)
        g.vq, g.lq, g.vm_issued = list(sv3[0]), list(sv3[1]), sv3[2]

    tags = {}
    realI = g.I
    def I(text):
        if text.startswith('__tag__'):
            tags[int(text[7:])] = g.vm_tag(); return
        if text == '__side__':
            side_addr(); realI(f's_lshl_b32 s72, s{sR4}, 1'); side_store('s72', 128, 94); realI('s_add_u32 s72, s72, 1'); side_store('s72', 132, 96); side_store('8', 136, 98); wphi_build()
            return
        if text.startswith('__count__'):
            cst = int(text[9:] or 0)
            if late:
                realI('s_lshr_b32 s61, s2, 3'); realI('s_and_b32 s61, s61, 3'); realI('s_lshl_b32 s61, s61, 2'); realI(f's_add_u32 s61, s61, s{sR4}')
                realI(f's_cmp_lg_u32 s61, {4*cst}')
            else:
                realI(f'v_mov_b32 v14, {M_CNT+48}'); realI('v_mov_b32 v15, 1')
                realI('s_mov_b64 exec, 1')
                realI('ds_add_rtn_u32 v15, v14, v15')
                realI('s_waitcnt lgkmcnt(0)')
                realI('s_mov_b64 exec, -1')
                realI('v_readfirstlane_b32 s61, v15')
                realI('s_cmp_lg_u32 s61, 3')
            realI(f's_cbranch_scc1 k1_nocount{cst}')
            sv2 = (list(g.vq), list(g.lq), g.vm_issued)
            realI(f's_lshl_b32 s61, s{sCG}, 4'); realI('v_mov_b32 v14, s61'); realI('v_mov_b32 v15, 1')
            realI('s_mov_b64 exec, 1')
            realI(f'buffer_atomic_add v15, v14, s[{SD}:{SD+3}], 0 offen sc1')
            realI('s_mov_b64 exec, -1')
            g.label(f'k1_nocount{cst}', nop=False)
            g.vq, g.lq, g.vm_issued = list(sv2[0]), list(sv2[1]), sv2[2]
            return
        if text == '__sideB__':
            wphi_build(); return
        realI(text)
    for j in range(pro):
        for grp in dma_stage(j, 'A'):
            for l in grp: I(l)
    late_setup()
    for q in range(4): I(f'v_mov_b32 v{16+q}, 0')
    I(f'v_add_u32 v14, {M_Z0}, v4')
    I('ds_write_b128 v14, v[16:19] offset:1024')
    I(f's_cmp_lg_u32 s{sR4}, 0')
    I('s_cbranch_scc1 k1_noreset')
    svr = (list(g.vq), list(g.lq), g.vm_issued)
    I(f's_lshl_b32 s60, s{sCG}, 7'); I(f's_lshl_b32 s61, s{sRB}, 2'); I('s_add_u32 s60, s60, s61'); I(f's_add_u32 s60, s60, {FLAG_OFF}')
    I(f's_lshl_b32 s61, s{sRB}, 7'); I(f's_lshl_b32 s62, s{sCG}, 2'); I('s_add_u32 s61, s61, s62'); I(f's_add_u32 s61, s61, {FLAG_OFF}')
    I('v_lshlrev_b32 v14, 12, v1'); I('v_add_u32 v14, s61, v14'); I('v_mov_b32 v15, s60')
    I('v_cmp_eq_u32 vcc, 0, v1'); I('v_cndmask_b32 v14, v14, v15, vcc')
    I('s_lshl_b32 s60, s2, 2'); I(f's_add_u32 s60, s60, {FLAG_OFF+0x3000}'); I('v_mov_b32 v15, s60')
    I('v_cmp_eq_u32 vcc, 3, v1'); I('v_cndmask_b32 v14, v14, v15, vcc'); I('v_mov_b32 v15, 0')
    I('s_mov_b64 exec, 15')
    I(f'buffer_store_dword v15, v14, s[{SW}:{SW+3}], 0 offen sc1')
    I('s_mov_b64 exec, -1')
    if sent:
        for q in range(4): I(f'v_mov_b32 v{20+q}, -1')
        I(f's_lshl_b32 s60, s{sCG}, 4'); I(f's_add_u32 s60, s60, s{sRB}')
        I('s_lshl_b32 s61, s60, 12'); I(f's_add_u32 s61, s61, {KVP_OFF}')
        for q in range(4):
            I(f'buffer_store_dwordx4 v[20:23], v4, s[{SW}:{SW+3}], s61 offen offset:{q*1024} sc1')
        I('s_lshl_b32 s61, s60, 8'); I(f's_add_u32 s61, s61, {ZP_OFF}')
        I('v_lshlrev_b32 v14, 2, v1')
        I(f'buffer_store_dword v20, v14, s[{SW}:{SW+3}], s61 offen sc1')
    g.label('k1_noreset', nop=False)
    g.vq, g.lq, g.vm_issued = list(svr[0]), list(svr[1]), svr[2]
    wphi_load()
    side_prep()
    I(f's_lshl_b32 s72, s{sR4}, 1')
    side_job('s72', 0, 94)
    I('s_add_u32 s72, s72, 1')
    side_job('s72', 1, 96)
    side_job('8', 2, 98)
    def hookA(s):
        if late: return [[f'__count__{s-2}']] if 2 <= s <= 5 else [['__side__']] if s == 6 else []
        return [['__side__']] if s == 3 else [['__count__']] if s == 6 else []
    phase0('A', hookA)
    cs_add([160], 0)
    cs_add([164, 168], 4)
    I('s_waitcnt lgkmcnt(0)')
    I('s_barrier')
    mark(); mark(1); mark(3)
    cs_total()
    stats_final()
    I('s_waitcnt lgkmcnt(0)')
    I('s_barrier')
    features(64, 112, 0, 32)
    mark(1)
    I('v_and_b32 v16, 15, v2'); I('v_lshrrev_b32 v17, 4, v2'); I('v_xor_b32 v17, v17, v3'); I('v_lshlrev_b32 v17, 6, v17')
    I('v_add_u32 v16, v16, v17')
    I('v_mov_b32 v18, 0x3f80'); I('v_mov_b32 v19, 0x3f800000')
    for mq in range(8):
        I(f'v_cmp_eq_u32 vcc, {2*mq}, v16')
        I(f'v_cndmask_b32 v{48+mq}, 0, v18, vcc')
        I(f'v_cmp_eq_u32 vcc, {2*mq+1}, v16')
        I(f'v_cndmask_b32 v{48+mq}, v{48+mq}, v19, vcc')
    DT = (112, 176)
    for tl in range(2):
        D = DT[tl]
        I(f'v_mfma_f32_32x32x16_bf16 {vr(D,16)}, {vr(32+8*tl,4)}, v[48:51], 0')
        I(f'v_mfma_f32_32x32x16_bf16 {vr(D,16)}, {vr(36+8*tl,4)}, v[52:55], {vr(D,16)}')
    I(f's_lshl_b32 s60, s{sR4}, 2'); I(f's_add_u32 s60, s60, {M_CNT+16}'); I('v_mov_b32 v14, s60')
    spin(14, 1)
    I(f's_lshl_b32 s60, s{sR4}, 11'); I(f's_add_u32 s60, s60, {M_VX}'); I('v_add_u32 v12, s60, v4')
    I('ds_read_b128 v[48:51], v12'); I('ds_read_b128 v[52:55], v12 offset:1024')
    for tl in range(2):
        D = DT[tl]
        I(f'v_add_f32 v{8+tl}, v{D}, v{D+1}'); I(f'v_add_f32 v{10+tl}, v{D+2}, v{D+3}')
        for r in range(4, 16, 2):
            I(f'v_add_f32 v{8+tl}, v{8+tl}, v{D+r}'); I(f'v_add_f32 v{10+tl}, v{10+tl}, v{D+r+1}')
        I(f'v_add_f32 v{8+tl}, v{8+tl}, v{10+tl}')
        for i in range(8):
            I(f'v_cvt_pk_bf16_f32 v{16+8*tl+i}, v{D+2*i}, v{D+2*i+1}')
    for tl, T in ((0, 32), (1, 192)):
        I(f'v_mfma_f32_32x32x16_bf16 {vr(T,16)}, {vr(16+8*tl,4)}, v[48:51], 0')
        I(f'v_mfma_f32_32x32x16_bf16 {vr(T,16)}, {vr(20+8*tl,4)}, v[52:55], {vr(T,16)}')
    I('v_and_b32 v10, 16, v1'); I('v_cmp_ne_u32 vcc, 0, v10')
    for tl, T in ((0, 32), (1, 192)):
        for j in range(8):
            I(f'v_cndmask_b32 v{64+8*tl+j}, v{T+j}, v{T+8+j}, vcc')
    I(f's_lshl_b32 s60, s{sR4}, 12'); I(f's_add_u32 s60, s60, {M_KVX}')
    I('v_add_u32 v14, s60, v4')
    for q in range(4):
        I(f'ds_write_b128 v14, {vr(64+4*q,4)} offset:{q*1024}')
    I(f's_lshl_b32 s60, s{sR4}, 11'); I(f's_add_u32 s60, s60, {M_ZX}')
    I('v_lshlrev_b32 v11, 3, v1'); I('v_add_u32 v14, s60, v11')
    I('ds_write_b64 v14, v[8:9]')
    I('s_waitcnt lgkmcnt(0)')
    I(f'v_mov_b32 v14, {M_CNT}'); I('v_mov_b32 v10, 1')
    I('s_mov_b64 exec, 1')
    I('ds_add_rtn_u32 v10, v14, v10')
    I('s_waitcnt lgkmcnt(0)')
    I('s_mov_b64 exec, -1')
    I(f'v_readfirstlane_b32 s{sPUB}, v10')
    mark(5)
    I(f's_cmp_lg_u32 s{sPUB}, 3')
    I('s_cbranch_scc1 k1_nopub')
    sv = (list(g.vq), list(g.lq), g.vm_issued)
    I(f'v_add_u32 v14, {M_KVX}, v4')
    PB = (16, 32, 64, 192)
    for w in range(4):
        for q in range(4):
            I(f'ds_read_b128 {vr(PB[w]+4*q,4)}, v14 offset:{w*4096+q*1024}')
    I(f'v_add_u32 v14, {M_ZX}, v11')
    for w in range(4):
        I(f'ds_read_b64 {vr(48+2*w,2)}, v14 offset:{w*2048}')
    for r in range(16):
        I(f'v_add_f32 v{16+r}, v{16+r}, v{32+r}')
        I(f'v_add_f32 v{192+r}, v{192+r}, v{64+r}')
        I(f'v_add_f32 v{16+r}, v{16+r}, v{192+r}')
    for e in range(2):
        I(f'v_add_f32 v{48+e}, v{48+e}, v{50+e}'); I(f'v_add_f32 v{52+e}, v{52+e}, v{54+e}'); I(f'v_add_f32 v{48+e}, v{48+e}, v{52+e}')
    I(f's_lshl_b32 s60, s{sCG}, 4'); I(f's_add_u32 s60, s60, s{sRB}')
    I('s_lshl_b32 s61, s60, 12'); I(f's_add_u32 s61, s61, {KVP_OFF}')
    for q in range(4):
        I(f'buffer_store_dwordx4 {vr(16+4*q,4)}, v4, s[{SW}:{SW+3}], s61 offen offset:{q*1024} sc1')
    I('v_permlane32_swap_b32 v48, v49')
    I('v_add_f32 v48, v48, v49')
    I('s_lshl_b32 s61, s60, 8'); I(f's_add_u32 s61, s61, {ZP_OFF}')
    I('v_lshlrev_b32 v14, 2, v1')
    I(f'buffer_store_dword v48, v14, s[{SW}:{SW+3}], s61 offen sc1')
    if sent:
        I(f'v_mov_b32 v14, {M_CNT+60}'); I('v_mov_b32 v15, 1')
        I('ds_write_b32 v14, v15')
    else:
        mark(5)
        I('s_waitcnt vmcnt(0)')
        mark(5)
        I(f's_lshl_b32 s60, s{sCG}, 7'); I(f's_lshl_b32 s61, s{sRB}, 2'); I('s_add_u32 s60, s60, s61'); I(f's_add_u32 s60, s60, {FLAG_OFF}')
        I('v_mov_b32 v14, s60'); I('v_mov_b32 v15, 1')
        I('s_mov_b64 exec, 1')
        I(f'buffer_store_dword v15, v14, s[{SW}:{SW+3}], 0 offen sc1')
        I('s_mov_b64 exec, -1')
    g.label('k1_nopub')
    g.vq, g.lq, g.vm_issued = list(sv[0]), list(sv[1]), sv[2]
    mark(1)
    done_flag(48, 4, 0x3000, 'k1_wfd', bywg=True)
    h_epi(80, 0)
    h_epi(96, 1, O=216)
    mark(1)
    if fused:
        done_flag(44, 8, 0x1000, 'k1_hdA')
        part2_pre(I, g, 'A')
        part2_main(I, g, stamp, marks_out, mark, 'A', lambda s_: None)
    else:
        marks_out()
        if stamp: stamp_end(I, sWAVE, SW, STAMP_OFF)
        I('s_endpgm')

    g.label('k1_pathB')
    g.vq, g.lq, g.vm_issued = list(saved[0]), list(saved[1]), saved[2]
    tags.clear()
    mk[0] = 0
    for j in range(pro):
        for grp in dma_stage(j, 'B'):
            for l in grp: I(l)
    late_setup()
    wphi_load()
    I('v_lshlrev_b32 v16, 2, v1'); I(f's_lshl_b32 s60, s{sHT0}, 6')
    I(f'buffer_load_dword v144, v16, s[{SB1}:{SB1+3}], s60 offen')
    def hookB(s):
        if s == 3:
            return [['__sideB__', 'v_lshlrev_b32 v146, 16, v144', f'v_and_b32 v147, s{sMASK}, v144',
                     'v_lshlrev_b32 v145, 3, v1', f'v_add_u32 v145, {M_BIAS}, v145', 'ds_write_b64 v145, v[146:147]']]
        return []
    phase0('B', hookB)
    cs_add([160, 164], 1)
    cs_add([168, 172], 6)
    I('s_waitcnt lgkmcnt(0)')
    I('s_barrier')
    mark(); mark(1); mark(3)
    I(f's_lshl_b32 s60, s{sCG}, 4'); I('v_mov_b32 v148, s60')
    I(f'buffer_load_dword v149, v148, s[{SD}:{SD+3}], 0 offen sc1')
    cs_total()
    stats_final()
    I('s_waitcnt lgkmcnt(0)')
    I('s_barrier')
    I(f's_lshl_b32 s60, s{sR4}, 8'); I(f's_add_u32 s60, s60, {M_RST}')
    I('v_lshlrev_b32 v16, 2, v2'); I('v_add_u32 v16, s60, v16')
    I('ds_write_b32 v16, v6'); I('ds_write_b32 v16, v7 offset:128')
    I('v_lshlrev_b32 v14, 4, v3'); I('v_add_u32 v14, s60, v14')
    for q in range(4):
        I(f'ds_read_b128 {vr(16+4*q,4)}, v14 offset:{128+q*32}')
    I('v_lshlrev_b32 v15, 2, v2'); I(f'v_add_u32 v15, {M_CST+128}, v15')
    I('ds_read_b32 v10, v15')
    for q in range(4):
        I(f'ds_read_b128 {vr(32+4*q,4)}, v14 offset:{q*32}')
    for r in range(16):
        I(f'v_mul_f32 v{16+r}, v{16+r}, v10')
        I(f'v_fma_f32 v{64+r}, v{64+r}, v{32+r}, -v{16+r}')
    for i in range(8):
        I(f'v_cvt_pk_bf16_f32 v{48+i}, v{64+2*i}, v{64+2*i+1}')
    I(f's_lshl_b32 s60, s{sR4}, 11'); I(f's_add_u32 s60, s60, {M_VX}'); I('v_add_u32 v12, s60, v4')
    I('ds_write_b128 v12, v[48:51]'); I('ds_write_b128 v12, v[52:55] offset:1024')
    I('s_waitcnt lgkmcnt(0)')
    I(f's_lshl_b32 s60, s{sR4}, 2'); I(f's_add_u32 s60, s60, {M_CNT+16}'); I('v_mov_b32 v14, s60'); I('v_mov_b32 v15, 1')
    I('ds_write_b32 v14, v15')
    mark(1)
    I(f's_and_b32 s60, s{sCG}, 3'); I('s_cmp_eq_u32 s60, 3'); I('s_cbranch_scc1 k1_b_nopair')
    sv = (list(g.vq), list(g.lq), g.vm_issued)
    h_epi(96, 2)
    h_epi(112, 3, O=216)
    g.label('k1_b_nopair')
    g.vq, g.lq, g.vm_issued = list(sv[0]), list(sv[1]), sv[2]
    mark(1)
    features(80, 64, 2, 48)
    mark(1)
    KV0, Z0 = 192, 30
    otag = [None]
    def o_loads():
        I(f's_lshl_b32 s60, s{sCG}, 16'); I(f's_lshl_b32 s61, s{sR4}, 10'); I('s_add_u32 s60, s60, s61'); I(f's_add_u32 s60, s60, {KVP_OFF}')
        I(f's_lshl_b32 s61, s{sCG}, 12'); I(f's_add_u32 s61, s61, {ZP_OFF}')
        for i in range(4):
            I(f'buffer_load_dwordx4 {vr(Z0+4*i,4)}, v4, s[{SW}:{SW+3}], s61 offen offset:{i*1024} sc1')
        for rbp in range(16):
            I(f'buffer_load_dwordx4 {vr(KV0+4*rbp,4)}, v4, s[{SW}:{SW+3}], s60 offen sc1')
            I('s_add_u32 s60, s60, 4096')
    def o_reduce():
        for e in range(4):
            I(f'v_add_f32 v{Z0+e}, v{Z0+e}, v{Z0+4+e}'); I(f'v_add_f32 v{Z0+8+e}, v{Z0+8+e}, v{Z0+12+e}'); I(f'v_add_f32 v{Z0+e}, v{Z0+e}, v{Z0+8+e}')
        for sw in ('v_permlane32_swap_b32', 'v_permlane16_swap_b32'):
            for e in range(4): I(f'v_mov_b32 v{Z0+4+e}, v{Z0+e}')
            for e in range(4):
                I(f'{sw} v{Z0+e}, v{Z0+4+e}')
                I(f'v_add_f32 v{Z0+e}, v{Z0+e}, v{Z0+4+e}')
        I(f'v_cvt_pk_bf16_f32 v{Z0+6}, v{Z0}, v{Z0+1}'); I(f'v_cvt_pk_bf16_f32 v{Z0+7}, v{Z0+2}, v{Z0+3}')
        T0, T1, T2 = Z0 + 8, Z0 + 9, Z0 + 10
        I(f'v_and_b32 v{T0}, 15, v1')
        I(f'v_lshrrev_b32 v{T1}, 3, v{T0}'); I(f'v_lshlrev_b32 v{T1}, 5, v{T1}')
        I(f'v_lshrrev_b32 v{T2}, 2, v{T0}'); I(f'v_and_b32 v{T2}, 1, v{T2}'); I(f'v_lshlrev_b32 v{T2}, 6, v{T2}'); I(f'v_add_u32 v{T1}, v{T1}, v{T2}')
        I(f'v_and_b32 v{T2}, 3, v{T0}'); I(f'v_lshlrev_b32 v{T2}, 3, v{T2}'); I(f'v_add_u32 v{T1}, v{T1}, v{T2}')
        I(f's_lshl_b32 s60, s{sR4}, 7'); I(f's_add_u32 s60, s60, {M_ZL}'); I(f'v_add_u32 v{T1}, s60, v{T1}')
        I(f'ds_write_b64 v{T1}, {vr(Z0+6,2)}')
        for st in (8, 4, 2, 1):
            for i in range(st):
                for e in range(0, 4, 2): I(f'v_pk_add_f32 {vr(KV0+4*i+e,2)}, {vr(KV0+4*i+e,2)}, {vr(KV0+4*(i+st)+e,2)}')
        I(f'v_cvt_pk_bf16_f32 v{KV0+8}, v{KV0}, v{KV0+1}'); I(f'v_cvt_pk_bf16_f32 v{KV0+9}, v{KV0+2}, v{KV0+3}')
        I(f's_lshl_b32 s60, s{sR4}, 4'); I(f's_add_u32 s60, s60, {M_KVL}')
        I(f'v_lshlrev_b32 v{T1}, 6, v2'); I(f'v_lshlrev_b32 v{T0}, 3, v3'); I(f'v_add_u32 v{T1}, v{T1}, v{T0}'); I(f'v_add_u32 v{T1}, s60, v{T1}')
        I(f'ds_write_b64 v{T1}, {vr(KV0+8,2)}')
    def o_final():
        a0, a1, a2, a3 = Z0, Z0 + 1, Z0 + 2, Z0 + 3
        I(f'v_lshrrev_b32 v{a0}, 2, v2'); I(f'v_and_b32 v{a0}, 1, v{a0}')
        I(f'v_lshrrev_b32 v{a1}, 3, v2'); I(f'v_lshlrev_b32 v{a1}, 2, v{a1}'); I(f'v_and_b32 v{a2}, 3, v2'); I(f'v_add_u32 v{a1}, v{a1}, v{a2}')
        I(f'v_lshlrev_b32 v{a2}, 4, v{a0}'); I(f'v_add_u32 v{a1}, v{a1}, v{a2}'); I(f'v_lshlrev_b32 v{a1}, 6, v{a1}'); I(f'v_add_u32 v{a1}, {M_KVL}, v{a1}')
        I(f's_lshl_b32 s60, s{sR4}, 7'); I(f's_add_u32 s60, s60, {M_ZL}')
        I(f'v_lshlrev_b32 v{a2}, 6, v3'); I(f'v_add_u32 v{a2}, s60, v{a2}')
        I(f'v_mov_b32 v{a3}, {M_ZERO}')
        I(f'v_cmp_eq_u32 vcc, v{a0}, v3')
        I(f'v_cndmask_b32 v{a1}, v{a3}, v{a1}, vcc'); I(f'v_cndmask_b32 v{a2}, v{a3}, v{a2}, vcc')
        for m in range(4):
            I(f'ds_read_b128 {vr(192+4*m,4)}, v{a1} offset:{m*16}')
            I(f'ds_read_b128 {vr(208+4*m,4)}, v{a2} offset:{m*16}')
        for m in range(4):
            I(f'v_mfma_f32_32x32x16_bf16 v[224:239], {vr(192+4*m,4)}, {vr(48+4*m,4)}, {"0" if m==0 else "v[224:239]"}')
            I(f'v_mfma_f32_32x32x16_bf16 v[240:255], {vr(208+4*m,4)}, {vr(48+4*m,4)}, {"0" if m==0 else "v[240:255]"}')
        I(f'v_add_f32 v{a0}, 0x358637bd, v240')
        I(f'v_rcp_f32 v{a0}, v{a0}')
        for r in range(16): I(f'v_mul_f32 v{224+r}, v{224+r}, v{a0}')
        for i in range(8): I(f'v_cvt_pk_bf16_f32 v{Z0+4+i}, v{224+2*i}, v{224+2*i+1}')
        I(f's_mul_i32 s60, s{sRT}, {NKS}'); I(f's_lshl_b32 s61, s{sCG}, 1'); I('s_add_u32 s60, s60, s61'); I('s_add_u32 s60, s60, 112')
        I('s_lshl_b32 s60, s60, 10')
        I(f'buffer_store_dwordx4 {vr(Z0+4,4)}, v4, s[{SW}:{SW+3}], s60 offen sc1')
        I(f'buffer_store_dwordx4 {vr(Z0+8,4)}, v4, s[{SW}:{SW+3}], s60 offen offset:1024 sc1')
        otag[0] = g.vm_tag()
    done_flag(44, 8, 0x1000, 'k1_hdB')
    if sent:
        I(f's_lshl_b32 s60, s{sCG}, 4'); I('v_mov_b32 v12, s60')
        I('s_mov_b32 s62, 0')
        g.label('k1_pc', nop=False)
        I('v_cmp_gt_u32 vcc, 16, v149')
        I('s_add_u32 s62, s62, 1')
        I('s_cmp_eq_u64 vcc, 0')
        I('s_cbranch_scc1 k1_pcok')
        I(f'buffer_load_dword v149, v12, s[{SD}:{SD+3}], 0 offen sc1')
        I('s_waitcnt vmcnt(0)')
        I('s_cmp_lt_u32 s62, 0x400000')
        I('s_cbranch_scc1 k1_pc')
        g.label('k1_pcok', nop=False)
        I(f'v_mov_b32 v14, {M_CNT+60}')
        spin(14, 1)
        g.forget_pending()
        mark(1)
        I('s_mov_b32 s62, 0')
        g.label('k1_retry', nop=False)
        o_loads()
        I(f'v_max_u32 v12, v{Z0}, v{Z0+1}')
        regs = list(range(Z0 + 2, Z0 + 16)) + list(range(KV0, KV0 + 64))
        for i in range(0, len(regs), 2):
            I(f'v_max3_u32 v12, v12, v{regs[i]}, v{regs[i+1]}')
        I('v_cmp_eq_u32 vcc, -1, v12')
        I('s_add_u32 s62, s62, 1')
        I('s_cmp_eq_u64 vcc, 0')
        I('s_cbranch_scc1 k1_gotkv')
        I(f's_sleep {slp}')
        I('s_cmp_lt_u32 s62, 0x100000')
        I('s_cbranch_scc1 k1_retry')
        g.label('k1_gotkv', nop=False)
    else:
        I(f's_cmp_lg_u32 s{sR4}, 0')
        I('s_cbranch_scc1 k1_waitflag')
        I('v_and_b32 v14, 15, v1'); I('v_lshlrev_b32 v14, 2, v14')
        I(f's_lshl_b32 s62, s{sCG}, 7'); I(f's_add_u32 s62, s62, {FLAG_OFF}')
        I(f's_lshl_b32 s60, s{sCG}, 4'); I('v_mov_b32 v12, s60')
        I('s_mov_b32 s61, 0')
        I('v_cmp_gt_u32 s[64:65], 16, v149')
        I('s_branch k1_poll2')
        g.label('k1_poll', nop=False)
        I(f'buffer_load_dword v11, v12, s[{SD}:{SD+3}], 0 offen sc1')
        I('s_waitcnt vmcnt(0)')
        I('v_cmp_gt_u32 s[64:65], 16, v11')
        I('s_add_u32 s61, s61, 1')
        g.label('k1_poll2', nop=False)
        I('s_cmp_ge_u32 s61, 0x400000')
        I('s_cbranch_scc1 k1_pollok')
        I('s_cmp_lg_u64 s[64:65], 0')
        I('s_cbranch_scc1 k1_poll')
        I(f'buffer_load_dword v10, v14, s[{SW}:{SW+3}], s62 offen sc1')
        I('s_waitcnt vmcnt(0)')
        I('v_cmp_ne_u32 vcc, 1, v10')
        I('s_add_u32 s61, s61, 1')
        I('s_cmp_eq_u64 vcc, 0')
        I('s_cbranch_scc1 k1_pollok')
        I(f's_sleep {slp}')
        I('s_cmp_lt_u32 s61, 0x400000')
        I('s_cbranch_scc1 k1_poll2')
        g.label('k1_pollok', nop=False)
        I(f'v_mov_b32 v14, {M_CNT+40}'); I('v_mov_b32 v15, 1')
        I('ds_write_b32 v14, v15')
        I('s_branch k1_polled')
        g.label('k1_waitflag', nop=False)
        I(f'v_mov_b32 v14, {M_CNT+40}')
        spin(14, 1)
        g.label('k1_polled', nop=False)
        g.forget_pending()
        mark(1)
        o_loads()
    o_reduce()
    mark(1)
    sync4(4)
    o_final()
    mark(1)
    def hookP2(s_):
        if s_ == 1: done_flag(52, 4, 0x2000, 'k1_od', tag=otag[0], va=Z0)
    part2_pre(I, g, 'B')
    part2_main(I, g, stamp, marks_out, mark, 'B', hookP2)
    g.raw('k1_end:')
    I('s_endpgm')

K1_DESC = """
.amdhsa_kernel k1_kernel
  .amdhsa_next_free_vgpr 256
  .amdhsa_next_free_sgpr 102
  .amdhsa_accum_offset 256
  .amdhsa_group_segment_fixed_size 0
  .amdhsa_kernarg_size 96
  .amdhsa_user_sgpr_count 2
  .amdhsa_user_sgpr_kernarg_segment_ptr 1
  .amdhsa_system_sgpr_workgroup_id_x 1
  .amdhsa_float_denorm_mode_32 3
.end_amdhsa_kernel
"""
```

```python
import sys, importlib; sys.path.insert(0,"dev")
import gen_all
from asmgen import Gen
def text(modname, kw):
    m = importlib.import_module(modname)
    NAME = gen_all.NAME; kn = NAME + "_kernel"
    hdr = open(f"cdna_kernels/{NAME}.s.ref").read().split("\n")
    head = [l for l in hdr if l.startswith(";") and "@launch" not in l and "Override launch" not in l and "grid=ceil" not in l]
    g = Gen()
    for l in head: g.raw(l)
    g.raw('; @launch grid=(256,1,1) block=(512,1,1) lds=%d' % m.K1_LDS)
    g.raw('.amdgcn_target "amdgcn-amd-amdhsa--gfx950"'); g.raw('.text')
    g.raw(f'.globl {kn}\n.type {kn},@function')
    m.gen_k1(g, stamp=False, fused=True, kname=kn, **kw)
    g.raw('.section .rodata,"a"'); g.raw('.p2align 6'); g.raw(m.K1_DESC.strip().replace("k1_kernel", kn))
    return g.text()
for a in sys.argv[1:]:
    nm, _, opt = a.partition(':')
    kw = {k: int(v) for k, v in (p.split('=') for p in opt.split(',') if p)}
    open(f"cand_{a.replace(':','_').replace('=','').replace(',','_')}.s", "w").write(text(nm, kw))
```
